```python
import torch

def _softmax(x, axis=-1):
    return torch.softmax(x, dim=axis)
def _gelu(x):
    return torch.nn.functional.gelu(x, approximate="tanh")
def _silu(x):
    return torch.nn.functional.silu(x)
def _sigmoid(x):
    return torch.sigmoid(x)
def _layernorm(x, axis=-1, eps=1e-5):
    m = x.mean(dim=axis, keepdim=True)
    v = x.var(dim=axis, keepdim=True, unbiased=False)
    return (x - m) / torch.sqrt(v + eps)
def _scatter_add(tgt, idx, src, axis=0):
    return tgt.clone().index_add_(axis, idx, src)
def _segment_sum(src, seg, n):
    out = torch.zeros((n,) + src.shape[1:], dtype=src.dtype)
    return out.index_add_(0, seg, src)
def _pad(x, pw):
    flat = tuple(v for pair in reversed(pw) for v in pair)
    return torch.nn.functional.pad(x, flat)

kernel_name = 'recurrent_scan__ssm_conv_s5__mixer_channel_mlp__prompt'

def setup_inputs():

    _w = (lambda a: (lambda t: t.to(torch.bfloat16) if t.is_floating_point() else t)(torch.as_tensor(a)))
    def _A_setup():
        B, S, D = 1, 2048, 576
        P = D
        Lambda_re = -0.5 * (lambda _x: torch.exp(torch.as_tensor(_x)))((lambda *s: torch.randn(*s, dtype=torch.bfloat16) * 0.2)(P))
        Lambda_im = (lambda *s: torch.randn(*s, dtype=torch.bfloat16) * 0.8)(P) * 1.0
        B_re = (lambda *s: torch.randn(*s, dtype=torch.bfloat16) * 0.2)(P, D) * (D ** -0.5)
        B_im = (lambda *s: torch.randn(*s, dtype=torch.bfloat16) * 0.2)(P, D) * (D ** -0.5)
        C_re = (lambda *s: torch.randn(*s, dtype=torch.bfloat16) * 0.2)(D, P) * (P ** -0.5)
        C_im = (lambda *s: torch.randn(*s, dtype=torch.bfloat16) * 0.2)(D, P) * (P ** -0.5)
        log_dt = (lambda *s: torch.randn(*s, dtype=torch.bfloat16) * 0.2)(P) * 0.3 - 2.0
        Dskip = (lambda *s: torch.randn(*s, dtype=torch.bfloat16) * 0.05)(D)
        return {
            "x": _w((lambda *s: torch.randn(*s, dtype=torch.bfloat16) * 0.05)(B, S, D)),
            "Lambda_re": _w(Lambda_re),
            "Lambda_im": _w(Lambda_im),
            "B_re": _w(B_re),
            "B_im": _w(B_im),
            "C_re": _w(C_re),
            "C_im": _w(C_im),
            "log_dt": _w(log_dt),
            "Dskip": _w(Dskip),
        }
    _A_in = _A_setup()

    def _B_setup():
        B, S, D, F = 1, 2048, 576, 4608
        return {
            "x": _w((lambda *s: torch.randn(*s, dtype=torch.bfloat16) * 0.05)(B, S, D)),
            "w1": _w((lambda *s: torch.randn(*s, dtype=torch.bfloat16) * 3.2)(D, F) * (D ** -0.5)),
            "b1": _w((lambda *s: torch.randn(*s, dtype=torch.bfloat16) * 1.6)(F)),
            "w2": _w((lambda *s: torch.randn(*s, dtype=torch.bfloat16) * 0.1)(F, D) * (F ** -0.5)),
            "b2": _w((lambda *s: torch.randn(*s, dtype=torch.bfloat16) * 0.1)(D)),
        }
    _B_in = _B_setup()

    return {
        "A_x": _A_in["x"],
        "A_Lambda_re": _A_in["Lambda_re"],
        "A_Lambda_im": _A_in["Lambda_im"],
        "A_B_re": _A_in["B_re"],
        "A_B_im": _A_in["B_im"],
        "A_C_re": _A_in["C_re"],
        "A_C_im": _A_in["C_im"],
        "A_log_dt": _A_in["log_dt"],
        "A_Dskip": _A_in["Dskip"],
        "B_x": _B_in["x"],
        "B_w1": _B_in["w1"],
        "B_b1": _B_in["b1"],
        "B_w2": _B_in["w2"],
        "B_b2": _B_in["b2"],
    }

def reference(A_x, A_Lambda_re, A_Lambda_im, A_B_re, A_B_im, A_C_re, A_C_im, A_log_dt, A_Dskip, B_x, B_w1, B_b1, B_w2, B_b2):
    def _A_ref(x, Lambda_re, Lambda_im, B_re, B_im, C_re, C_im, log_dt, Dskip):
        Bsz, L, H = x.shape
        Lam = Lambda_re + 1j * Lambda_im
        Bmat = B_re + 1j * B_im
        Cmat = C_re + 1j * C_im
        dt = torch.exp(log_dt)
        Lam_bar = torch.exp(dt * Lam)
        B_bar = ((Lam_bar - 1.0) / Lam)[:, None] * Bmat
        Bu = torch.einsum("bld,pd->blp", x + 0j, B_bar)
        h = torch.zeros_like(Bu[:, 0, :])
        hs = []
        for t in range(L):
            h = Lam_bar[None, :] * h + Bu[:, t, :]
            hs.append(h)
        hseq = torch.stack(hs, 1)
        y = 2.0 * torch.einsum("blp,dp->bld", hseq, Cmat).real + x * Dskip[None, None, :]
        return y

    def _B_ref(x, w1, b1, w2, b2):
        y = _layernorm(x, axis=-1)
        h = _gelu(torch.einsum("bsd,df->bsf", y, w1) + b1)
        return torch.einsum("bsf,fd->bsd", h, w2) + b2

    x = A_x
    xn = _layernorm(x, axis=-1)
    s = _A_ref(xn, A_Lambda_re, A_Lambda_im, A_B_re, A_B_im, A_C_re, A_C_im, A_log_dt, A_Dskip)
    g = _silu(_B_ref(xn, B_w1, B_b1, B_w2, B_b2))
    return x + s * g
```

```python
import sys, struct, math
sys.path.insert(0, 'gen')
from sched import Prog, Ins

def f2u(x): return struct.unpack('<I', struct.pack('<f', x))[0]

T, D, F = 2048, 576, 4608
SLOT = 24576
NBUF = 6
LDS_X = NBUF * SLOT
LDS_TOTAL = 163840
WS_FLAG = 0
WS_STAT = 0x10000
WS_STAMP = 0x20000
WS_E = 0x80000
WS_PART = 0x100000
PART_SZ = T * D * 2
WS_H = 0x1400000
WS_SIZE = WS_H + 64 * 3 * 98304

sX, sW1, sW2, sWS, sMISC, sDBG, sW3 = 4, 8, 12, 16, 20, 24, 52
sI, sJ, sC, sW = 28, 29, 30, 31
sW1B = 32; sW2B = 33
sLW = 36; sXB = 37
sT0 = 38; sT1 = 39; sT2 = 40; sT3 = 41
sHOWN = 42; sHREM = 43
sNONCE = 45; sC1 = 46; sFLAG = 47; sPART = 48; sCNT = 49
sMASK = 50; sT4 = 51
sSTAMP = 56

def srd(p, d, nbytes, back=0):
    if back:
        p('s_sub_u32 s%d, s%d, %d', d, d, back)
        p('s_subb_u32 s%d, s%d, 0', d + 1, d + 1)
    p('s_and_b32 s%d, s%d, 0xffff', d + 1, d + 1)
    p('s_mov_b32 s%d, 0x%x', d + 2, nbytes + back)
    p('s_mov_b32 s%d, 0x20000', d + 3)

def stamp(p, o, k):
    if o.stamps and k < 22:
        p('s_memtime s[%d:%d]', sSTAMP + 2 * k, sSTAMP + 2 * k + 1)

def dump_stamps(p, o, vt, va):
    if not o.stamps: return
    p('s_waitcnt vmcnt(0)')
    stamp(p, o, 21)
    p('s_waitcnt lgkmcnt(0)')
    p('v_mov_b32 v%d, 0', vt)
    for k in range(22):
        p('v_writelane_b32 v%d, s%d, %d', vt, sSTAMP + 2 * k, k)
    p('v_writelane_b32 v%d, s%d, 22', vt, sJ)
    p('s_lshl_b32 s%d, s2, 2', sT0)
    p('s_add_u32 s%d, s%d, s%d', sT0, sT0, sW)
    p('s_lshl_b32 s%d, s%d, 8', sT0, sT0)
    p('s_add_u32 s%d, s%d, 0x%x', sT0, sT0, WS_STAMP)
    p('v_lshlrev_b32 v%d, 2, v0', va)
    p('buffer_store_dword v%d, v%d, s[%d:%d], s%d offen', vt, va, sWS, sWS + 3, sT0)

class Timeline:
    def __init__(self, p, dist, wper, budget, drop=''):
        self.p = p; self.dist = dist; self.wper = wper; self.budget = budget
        self.gaps = []; self.q = [[], []]; self.events = {}; self.done = set()
        self.forced = 0; self.drop = drop; self.g = -1; self.log = {}; self.where = {}
        self.flog = {}
    def at(self, g, fn): self.events.setdefault(g, []).append(fn)
    def job(self, ins, earliest, cost=None, pri=0, gives=None, needs=None, tag=None, after=None):
        if after:
            self.call(lambda: None, earliest, 0, None, pri, [after[0]], lag=after[1])
        if isinstance(ins, str): ins = Ins(ins, tag=tag, gives=gives, needs=needs or ())
        if ins.kind in ('ds', 'salu'): ins.cost = 4
        if ins.kind == 'vmem': ins.cost = 8
        if cost is not None: ins.cost = cost
        if ins.gives: self.where[ins.gives] = pri
        self.q[pri].append((ins, earliest)); return ins
    def call(self, fn, earliest, cost=0, gives=None, pri=0, needs=(), lag=0):
        if gives: self.where[gives] = pri
        self.q[pri].append(((fn, cost, gives, tuple(needs), lag), earliest))
    def cost(self, it): return it[1] if isinstance(it, tuple) else it.cost
    def needs(self, it): return it[3] if isinstance(it, tuple) else it.needs
    def pop(self, k):
        it, _ = self.q[k][0]
        self.force(self.needs(it))
        self.q[k].pop(0)
        if isinstance(it, tuple):
            it[0](); gives = it[2]
        else:
            if not ('v' in self.drop and it.kind in ('valu', 'trans')): self.p.add(it)
            gives = it.gives
        if gives: self.done.add(gives); self.log[gives] = self.g
        return self.cost(it)
    def force(self, needs):
        for n in needs:
            while n not in self.done:
                assert n in self.where, 'unknown need %s' % (n,)
                k = self.where[n]
                assert self.q[k], 'unsatisfied need %s' % (n,)
                assert self.q[k][0][1] <= self.g + 1, 'forcing %s too early at gap %d (earliest %d)' % (n, self.g, self.q[k][0][1])
                c = self.pop(k)
                self.forced += c; self.flog[n] = self.flog.get(n, 0) + c
    def ready(self, k, g):
        if not self.q[k] or self.q[k][0][1] > g: return False
        it = self.q[k][0][0]
        lag = it[4] if isinstance(it, tuple) else 0
        return all(n in self.done and g >= self.log[n] + lag for n in self.needs(it))
    def run(self, slot_fn):
        p = self.p; G = len(self.gaps); dist = self.dist
        for q in self.q: q.sort(key=lambda x: x[1])
        def reads(g):
            c = 0
            if g < G:
                m, rds, slot, first = self.gaps[g]
                if first: c += slot_fn(slot) or 0
                for r in rds:
                    if 'r' not in self.drop: p.add(r)
            return c
        for g in range(dist): reads(g)
        for fn in self.events.get(-1, []): fn()
        carry = 0
        for g in range(G):
            m = self.gaps[g][0]
            self.force(m.needs)
            self.g = g
            if 'm' not in self.drop: p.add(m)
            used = reads(g + dist)
            for fn in self.events.get(g, []): used += fn() or 0
            if (g + 1) % self.wper == 0:
                w = set()
                for k in range(g + 1, min(G, g + 1 + self.wper)):
                    for r in self.gaps[k][1]: w |= r.wr
                p.waitregs(w); used += 4
            bud = self.budget(g) + carry
            while True:
                k = 0 if self.ready(0, g) else (1 if self.ready(1, g) else None)
                if k is None or used + self.cost(self.q[k][0][0]) > bud: break
                used += self.pop(k)
            more = self.ready(0, g) or self.ready(1, g)
            carry = max(-8, min(4, bud - used)) if more else 0
        self.g = G + 1000
        while self.q[0]: self.pop(0)
        while self.q[1]: self.pop(1)

def fallback(tail, name, loads, check):
    tail.append('%s:' % name)
    tail.append('    s_mov_b32 s%d, 100000' % sCNT)
    tail.append('%s_l:' % name)
    tail.append('    s_sleep 1')
    for l in loads: tail.append('    ' + l)
    tail.append('    s_waitcnt vmcnt(0)')
    for c in check:
        tail.append('    ' + c); tail.append('    s_nop 1')
    tail.append('    s_nop 3')
    tail.append('    s_cbranch_vccz %s_b' % name)
    tail.append('    s_sub_u32 s%d, s%d, 1' % (sCNT, sCNT))
    tail.append('    s_cmp_lg_u32 s%d, 0' % sCNT)
    tail.append('    s_cbranch_scc1 %s_l' % name)
    tail.append('    s_branch %s_b' % name)

def x_dma_setup(p, vXE, vXO, t0, t1):
    p('v_lshrrev_b32 v%d, 3, v0', t0)
    p('v_lshrrev_b32 v%d, 4, v0', t1)
    p('v_xor_b32 v%d, v0, v%d', t1, t1)
    p('v_and_b32 v%d, 7, v%d', t1, t1)
    p('v_mul_u32_u24 v%d, 1152, v%d', vXE, t0)
    p('v_lshl_add_u32 v%d, v%d, 4, v%d', vXE, t1, vXE)
    p('v_xor_b32 v%d, 64, v%d', vXO, vXE)
    p('s_mul_i32 s%d, s%d, 6144', sLW, sW)
    p('s_lshl_b32 s%d, s%d, 2', sXB, sI)
    p('s_add_u32 s%d, s%d, s%d', sXB, sXB, sW)
    p('s_mul_i32 s%d, s%d, %d', sXB, sXB, 32 * 1152)

def x_dma(p, m, vXE, vXO):
    for u in range(2):
        for e in range(3):
            for g in range(2):
                p('s_add_u32 m0, s%d, %d', sLW, (2 * m + u) * SLOT + e * 2048 + g * 1024)
                p('s_add_u32 s%d, s%d, %d', sT0, sXB, (16 * u + 8 * g) * 1152 + m * 384 + e * 128)
                p('buffer_load_dwordx4 v%d, s[%d:%d], s%d offen lds', vXO if g else vXE, sX, sX + 3, sT0, tag=('x', m))

def x_read_addr(p, XA, vTok, t0, t1):
    p('v_lshrrev_b32 v%d, 4, v%d', t0, vTok)
    p('v_mul_u32_u24 v%d, %d, v%d', t0, SLOT, t0)
    p('v_and_b32 v%d, 15, v%d', t1, vTok)
    p('v_lshl_add_u32 v%d, v%d, 7, v%d', t0, t1, t0)
    p('v_add_u32 v%d, s%d, v%d', t0, sLW, t0)
    p('v_lshrrev_b32 v%d, 1, v%d', t1, t1)
    p('v_lshrrev_b32 v%d, 5, v0', XA[3])
    p('v_xor_b32 v%d, v%d, v%d', t1, t1, XA[3])
    p('v_lshl_add_u32 v%d, v%d, 4, v%d', XA[0], t1, t0)
    for k in range(1, 4):
        p('v_xor_b32 v%d, %d, v%d', XA[k], 32 * k, XA[0])

def x_stage(p, o, XA, xraw, vt, wdma):
    s0, s1, q0, q1, one = vt, vt + 2, vt + 1, vt + 3, vt + 4
    p('v_mov_b32 v%d, 0x3f803f80', one)
    k = 0
    for m in range(3):
        p.waitvm(('x', m))
        if m == 0: stamp(p, o, 1)
        for s in range(12 * m, 12 * m + 12):
            r = xraw(s); e = (s % 12) // 4
            p('ds_read_b128 v[%d:%d], v%d offset:%d', r, r + 3, XA[s % 4], e * 2048, tag=('xr', m))
        if m < 2:
            for a in XA: p('v_add_u32 v%d, %d, v%d', a, 2 * SLOT, a)
        for s in range(12 * m, 12 * m + 12):
            if s == 12 * m + 6:
                p.waitds(('xr', m))
                wdma(2 * m); wdma(2 * m + 1)
            for r in range(xraw(s), xraw(s) + 4):
                sa = s0 if k % 2 == 0 else s1; q = q0 if k % 2 == 0 else q1
                if k < 2:
                    p('v_dot2_f32_bf16 v%d, v%d, v%d, 0', sa, r, one)
                    p('v_dot2_f32_bf16 v%d, v%d, v%d, 0', q, r, r)
                else:
                    p('v_dot2_f32_bf16 v%d, v%d, v%d, v%d', sa, r, one, sa)
                    p('v_dot2_f32_bf16 v%d, v%d, v%d, v%d', q, r, r, q)
                k += 1
    p('v_add_f32 v%d, v%d, v%d', s0, s0, s1)
    p('v_add_f32 v%d, v%d, v%d', q0, q0, q1)
    p('v_mov_b32 v%d, v%d', s1, s0)
    p('v_mov_b32 v%d, v%d', q1, q0)
    p('v_permlane32_swap_b32 v%d, v%d', s0, s1)
    p('v_permlane32_swap_b32 v%d, v%d', q0, q1)
    p('v_add_f32 v%d, v%d, v%d', s0, s0, s1)
    p('v_add_f32 v%d, v%d, v%d', q0, q0, q1)
    p('v_mul_f32 v%d, 0x%x, v%d', s0, f2u(1.0 / D), s0)
    p('v_mul_f32 v%d, 0x%x, v%d', q0, f2u(1.0 / D), q0)
    p('v_fma_f32 v%d, -v%d, v%d, v%d', q0, s0, s0, q0)
    p('v_max_f32 v%d, 0, v%d', q0, q0)

def norm_jobs(tl, xraw, dst, vT, vSC, vSH):
    for s in range(36):
        kind, d = dst(s)
        for k in range(4):
            r = xraw(s) + k
            t0, t1 = vT + 2 * (k % 2), vT + 2 * (k % 2) + 1
            tl.job('v_lshlrev_b32 v%d, 16, v%d' % (t0, r), -1)
            tl.job('v_and_b32 v%d, s%d, v%d' % (t1, sMASK, r), -1)
            tl.job('v_fma_f32 v%d, v%d, v%d, v%d' % (t0, t0, vSC, vSH), -1)
            tl.job('v_fma_f32 v%d, v%d, v%d, v%d' % (t1, t1, vSC, vSH), -1)
            gv = ('y', s) if k == 3 else None
            if kind == 'v':
                tl.job(Ins('v_cvt_pk_bf16_f32 v%d, v%d, v%d' % (d + k, t0, t1), gives=gv), -1)
            else:
                tl.job('v_cvt_pk_bf16_f32 v%d, v%d, v%d' % (t0, t0, t1), -1)
                tl.job(Ins('v_accvgpr_write_b32 a%d, v%d' % (d + k, t0), gives=gv), -1)

def code_touch(p, label, endlabel, vdst, vt, sr):
    p('s_getpc_b64 s[%d:%d]', sT2, sT3)
    p.label(label + '_pc')
    p('s_mov_b32 s%d, s%d', sr, sT2)
    p('s_and_b32 s%d, s%d, 0xffff', sr + 1, sT3)
    p('s_mov_b32 s%d, %s-%s_pc', sr + 2, endlabel, label)
    p('s_mov_b32 s%d, 0x20000', sr + 3)
    p('s_lshl_b32 s%d, s%d, 2', sT0, sI)
    p('s_add_u32 s%d, s%d, s%d', sT0, sT0, sW)
    p('s_lshl_b32 s%d, s%d, 11', sT0, sT0)
    p('v_and_b32 v%d, 15, v0', vt)
    p('v_lshlrev_b32 v%d, 7, v%d', vt, vt)
    p('buffer_load_dword v%d, v%d, s[%d:%d], s%d offen', vdst, vt, sr, sr + 3, sT0)

def nonce_events(p, tl, tail, vP, g_issue, g_check, name):
    nl = 'buffer_load_dword v%d, off, s[%d:%d], 0 sc1' % (vP, sDBG, sDBG + 3)
    nc = ['v_cmp_eq_u32 vcc, 0, v%d' % vP]
    def iss(): p(nl); return 8
    tl.at(g_issue, iss)
    def chk():
        for c in nc: p(c)
        p('s_cbranch_vccnz %s', name)
        p.label(name + '_b')
        p('v_readfirstlane_b32 s%d, v%d', sNONCE, vP)
        fallback(tail, name, [nl], nc)
        return 12
    tl.at(g_check, chk)
```

```python
from common import *

def final_kernel(o):
    p = Prog()
    name = 'final_kernel'
    p.raw('.globl %s\n.p2align 8\n.type %s,@function' % (name, name))
    p.label(name)
    sX_, sWS_, sO, sDk, sB2 = 4, 8, 12, 16, 20
    p('s_cmp_ge_u32 s2, 576')
    p('s_cbranch_scc1 L_fend')
    p('s_load_dwordx2 s[%d:%d], s[0:1], 128', sWS_, sWS_ + 1)
    p('s_load_dwordx2 s[%d:%d], s[0:1], 0', sX_, sX_ + 1)
    p('s_load_dwordx2 s[%d:%d], s[0:1], 112', sO, sO + 1)
    p('s_load_dwordx2 s[%d:%d], s[0:1], 64', sDk, sDk + 1)
    p('s_load_dwordx2 s[%d:%d], s[0:1], 104', sB2, sB2 + 1)
    p('s_mul_i32 s24, s2, 7282')
    p('s_lshr_b32 s24, s24, 16')
    p('s_mul_i32 s25, s24, 9')
    p('s_sub_u32 s25, s2, s25')
    p('s_mul_i32 s26, s25, 43')
    p('s_lshr_b32 s26, s26, 7')
    p('s_mul_i32 s27, s26, 3')
    p('s_sub_u32 s27, s25, s27')
    p('s_lshr_b32 s28, s24, 2')
    p('s_mul_i32 s28, s28, 3')
    p('s_add_u32 s28, s28, s26')
    p('s_lshl_b32 s28, s28, 2')
    p('s_and_b32 s29, s24, 3')
    p('s_add_u32 s28, s28, s29')
    p('s_mul_i32 s28, s28, 12288')
    p('s_lshl_b32 s27, s27, 12')
    p('s_add_u32 s28, s28, s27')
    p('s_add_u32 s28, s28, 0x%x', WS_PART)
    p('v_and_b32 v1, 7, v0')
    p('v_lshrrev_b32 v2, 6, v0')
    p('v_lshl_add_u32 v1, v2, 3, v1')
    p('v_bfe_u32 v2, v0, 3, 3')
    p('v_lshlrev_b32 v3, 4, v1')
    p('v_lshl_add_u32 v3, v2, 9, v3')
    p('v_bfe_u32 v4, v0, 4, 2')
    p('v_lshlrev_b32 v4, 5, v4')
    p('v_and_b32 v2, 1, v2')
    p('v_lshl_add_u32 v4, v2, 3, v4')
    p('v_mul_u32_u24 v5, 1152, v1')
    p('v_add_u32 v5, v5, v4')
    p('v_lshlrev_b32 v6, 3, v1')
    p('v_lshlrev_b32 v7, 1, v5')
    srd(p, sWS_, WS_SIZE)
    P = lambda j: 16 + 4 * j
    for j in range(7):
        p('buffer_load_dwordx4 v[%d:%d], v3, s[%d:%d], s28 offen', P(j), P(j) + 3, sWS_, sWS_ + 3)
        if j < 6: p('s_add_u32 s28, s28, %d', PART_SZ)
    srd(p, sX_, T * D * 2); srd(p, sDk, D * 2); srd(p, sB2, D * 2); srd(p, sO, T * D * 4)
    p('s_lshl_b32 s27, s25, 7')
    p('s_mul_i32 s26, s24, %d', 32 * 1152)
    p('s_add_u32 s26, s26, s27')
    p('s_lshl_b32 s29, s24, 8')
    p('s_add_u32 s29, s29, 0x%x', WS_STAT)
    X, DK, B2, ST = 44, 48, 52, 8
    for k in range(2):
        p('buffer_load_dwordx2 v[%d:%d], v4, s[%d:%d], s27 offen offset:%d', B2 + 2 * k, B2 + 2 * k + 1, sB2, sB2 + 3, 16 * k)
    for k in range(2):
        p('buffer_load_dwordx2 v[%d:%d], v5, s[%d:%d], s26 offen offset:%d', X + 2 * k, X + 2 * k + 1, sX_, sX_ + 3, 16 * k)
    p('buffer_load_dwordx2 v[%d:%d], v6, s[%d:%d], s29 offen', ST, ST + 1, sWS_, sWS_ + 3)
    for k in range(2):
        p('buffer_load_dwordx2 v[%d:%d], v4, s[%d:%d], s27 offen offset:%d', DK + 2 * k, DK + 2 * k + 1, sDk, sDk + 3, 16 * k)
    p('s_lshl_b32 s26, s26, 1')
    p('v_mov_b32 v10, 0x00003f80')
    p('v_mov_b32 v11, 0x3f800000')
    p('s_mov_b32 s30, 0xffff0000')
    O, S = 56, 64
    def acc(dst, src, first):
        for e in range(8):
            p('v_dot2_f32_bf16 v%d, v%d, v%d, %s', dst + e, src + e // 2, 10 + e % 2, '0' if first else 'v%d' % (dst + e))
    for j in range(4): acc(O, P(j), j == 0)
    for j in range(3): acc(S, P(4 + j), j == 0)
    acc(O, B2, False)
    G = 16
    for e in range(8): p('v_mul_f32 v%d, 0x%x, v%d', G + e, f2u(-math.log2(math.e)), O + e)
    for e in range(8): p('v_exp_f32 v%d, v%d', G + e, G + e)
    for e in range(8): p('v_add_f32 v%d, 1.0, v%d', G + e, G + e)
    for e in range(8): p('v_rcp_f32 v%d, v%d', G + e, G + e)
    for e in range(8): p('v_mul_f32 v%d, v%d, v%d', G + e, G + e, O + e)
    XF, DF = 24, 32
    def unpack(dst, src):
        for e in range(8):
            if e % 2 == 0: p('v_lshlrev_b32 v%d, 16, v%d', dst + e, src + e // 2)
            else: p('v_and_b32 v%d, s30, v%d', dst + e, src + e // 2)
    unpack(XF, X); unpack(DF, DK)
    for e in range(8): p('v_sub_f32 v%d, v%d, v%d', O + e, XF + e, ST)
    for e in range(8): p('v_mul_f32 v%d, v%d, v%d', O + e, O + e, ST + 1)
    for e in range(8): p('v_fma_f32 v%d, v%d, v%d, v%d', S + e, O + e, DF + e, S + e)
    for e in range(8): p('v_fma_f32 v%d, v%d, v%d, v%d', XF + e, S + e, G + e, XF + e)
    for k in range(2):
        p('buffer_store_dwordx4 v[%d:%d], v7, s[%d:%d], s26 offen offset:%d', XF + 4 * k, XF + 4 * k + 3, sO, sO + 3, 32 * k)
    p.label('L_fend')
    p('s_endpgm')
    return p.finalize()
```

```python
NAME = "recurrent_scan__ssm_conv_s5__mixer_channel_mlp__prompt"

HEADER_COMMENT = open("cdna_kernels/%s.s.ref" % NAME).read().split("; Override launch")[0]

class Asm:
    def __init__(self):
        self.lines = []
    def __call__(self, s, *a):
        self.lines.append("    " + (s % a if a else s))
    def label(self, l):
        self.lines.append(l + ":")
    def raw(self, s):
        self.lines.append(s)
    def c(self, s):
        self.lines.append("    ; " + s)
    def text(self):
        return "\n".join(self.lines) + "\n"

def kernel_begin(a, name):
    a.raw(".globl %s" % name)
    a.raw(".p2align 8")
    a.raw(".type %s,@function" % name)
    a.label(name)

def descriptor(name, vgpr, sgpr, accum):
    return """.amdhsa_kernel %s
  .amdhsa_next_free_vgpr %d
  .amdhsa_next_free_sgpr %d
  .amdhsa_accum_offset %d
  .amdhsa_group_segment_fixed_size 0
  .amdhsa_kernarg_size 136
  .amdhsa_user_sgpr_count 2
  .amdhsa_user_sgpr_kernarg_segment_ptr 1
  .amdhsa_system_sgpr_workgroup_id_x 1
  .amdhsa_float_denorm_mode_32 3
.end_amdhsa_kernel
""" % (name, vgpr, sgpr, accum)

def file_text(launches, body, descs):
    s = HEADER_COMMENT
    if len(launches) == 1 and launches[0][0] == NAME + "_kernel":
        k, g, b, l = launches[0]
        s += "; @launch grid=(%d,1,1) block=(%d,1,1) lds=%d\n" % (g, b, l)
    else:
        for k, g, b, l in launches:
            s += "; @launch kernel=%s grid=(%d,1,1) block=(%d,1,1) lds=%d\n" % (k, g, b, l)
    s += '.amdgcn_target "amdgcn-amd-amdhsa--gfx950"\n.text\n'
    s += body
    s += '.section .rodata,"a"\n'
    for d in descs:
        s += ".p2align 6\n" + d
    return s

def srd(a, d, b, nbytes):
    a("s_mov_b32 s%d, s%d", d, b)
    a("s_and_b32 s%d, s%d, 0xffff", d + 1, b + 1)
    a("s_mov_b32 s%d, 0x%x", d + 2, nbytes)
    a("s_mov_b32 s%d, 0x20000", d + 3)
```

```python
import sys, struct, math, argparse
sys.path.insert(0, 'gen')
from kit import NAME, descriptor, file_text
from sched import Prog, Ins

def f2u(x): return struct.unpack('<I', struct.pack('<f', x))[0]

T, D, F = 2048, 576, 4608
SLOT = 24576
NBUF = 6
LDS_BIAS = NBUF * SLOT
LDS_MISC = LDS_BIAS + 1536
LDS_TOTAL = 163840
WS_FLAG = 0
WS_STAT = 0x10000
WS_STAMP = 0x20000
WS_E = 0x80000
WS_PART = 0x100000
PART_SZ = T * D * 2
WS_H = 0x1400000
WS_SIZE = WS_H + 64 * 3 * 98304

sX, sW1, sW2, sWS, sMISC, sDBG = 4, 8, 12, 16, 20, 24
sI, sJ, sC, sW = 28, 29, 30, 31
sW1B = 32; sW2B = 33
sLW1 = 36; sLW2 = 37
sT0 = 38; sT1 = 39; sT2 = 40; sT3 = 41
sHOWN = 42; sHREM = 43
sNONCE = 45; sC1 = 46; sFLAG = 47; sPART = 48; sCNT = 49
sMASK = 50
sSTAMP = 56

class Ctx: pass

def srd(p, d, b, nbytes):
    p('s_mov_b32 s%d, s%d', d, b)
    p('s_and_b32 s%d, s%d, 0xffff', d + 1, b + 1)
    p('s_mov_b32 s%d, 0x%x', d + 2, nbytes)
    p('s_mov_b32 s%d, 0x20000', d + 3)

def stamp(p, o, k):
    if o.stamps and k < 22:
        p('s_memtime s[%d:%d]', sSTAMP + 2 * k, sSTAMP + 2 * k + 1)

def dump_stamps(p, o, vt, va):
    if not o.stamps: return
    stamp(p, o, 21)
    p('s_waitcnt lgkmcnt(0)')
    p('v_mov_b32 v%d, 0', vt)
    for k in range(22):
        p('v_writelane_b32 v%d, s%d, %d', vt, sSTAMP + 2 * k, k)
    p('s_lshl_b32 s%d, s2, 2', sT0)
    p('s_add_u32 s%d, s%d, s%d', sT0, sT0, sW)
    p('s_lshl_b32 s%d, s%d, 8', sT0, sT0)
    p('s_add_u32 s%d, s%d, 0x%x', sT0, sT0, WS_STAMP)
    p('v_lshlrev_b32 v%d, 2, v0', va)
    p('buffer_store_dword v%d, v%d, s[%d:%d], s%d offen', vt, va, sWS, sWS + 3, sT0)

class Timeline:
    def __init__(self, p, dist, budget):
        self.p = p; self.dist = dist; self.budget = budget
        self.gaps = []; self.q = []; self.events = {}; self.done = set(); self.pre = {}
        self.forced = 0; self.nomfma = self.nords = self.novalu = False
    def at(self, g, fn): self.events.setdefault(g, []).append(fn)
    def job(self, ins, earliest, cost=None):
        if cost is not None: ins.cost = cost
        self.q.append((ins, earliest))
    def pop(self):
        ins, _ = self.q.pop(0)
        if not (self.novalu and ins.kind in ('valu', 'trans')): self.p.add(ins)
        if ins.gives: self.done.add(ins.gives)
        return ins.cost
    def force(self, needs):
        for n in needs:
            while n not in self.done:
                assert self.q, 'unsatisfied need %s' % (n,)
                self.forced += self.pop()
    def run(self, barrier_fn):
        p = self.p; G = len(self.gaps); dist = self.dist
        def reads(g):
            if g < G:
                m, rds, slot, first = self.gaps[g]
                if first: barrier_fn(slot)
                for r in rds:
                    self.force(r.needs)
                    if not self.nords: p.add(r)
        for g in range(dist): reads(g)
        for fn in self.events.get(-1, []): fn()
        carry = 0
        for g in range(G):
            m = self.gaps[g][0]
            self.force(m.needs)
            if not self.nomfma: p.add(m)
            reads(g + dist)
            for fn in self.events.get(g, []): fn()
            if g + 1 < G:
                w = set()
                for r in self.gaps[g + 1][1]: w |= r.wr
                p.waitregs(w)
            bud = self.budget(g) + carry
            used = 0
            while self.q and self.q[0][1] <= g and used + self.q[0][0].cost <= bud:
                used += self.pop()
            carry = min(4, bud - used) if (self.q and self.q[0][1] <= g) else 0
        while self.q: self.pop()

def common_entry(p, o):
    p('s_cmp_ge_u32 s2, 240')
    p('s_cbranch_scc1 L_end')
    stamp(p, o, 0)
    p('s_load_dwordx2 s[%d:%d], s[0:1], 0', sX, sX + 1)
    p('s_load_dwordx2 s[%d:%d], s[0:1], 128', sWS, sWS + 1)
    p('s_load_dwordx2 s[%d:%d], s[0:1], 120', sDBG, sDBG + 1)
    p('s_load_dwordx2 s[%d:%d], s[0:1], 80', sW1, sW1 + 1)
    p('s_load_dwordx2 s[%d:%d], s[0:1], 96', sW2, sW2 + 1)
    p('s_load_dwordx2 s[%d:%d], s[0:1], 88', sMISC, sMISC + 1)
    p('s_and_b32 s%d, s2, 7', sT0)
    p('s_lshr_b32 s%d, s2, 3', sT1)
    if o.map == 'A':
        p('s_mul_i32 s%d, s%d, 30', sT0, sT0)
        p('s_add_u32 s%d, s%d, s%d', sT0, sT0, sT1)
        p('s_and_b32 s%d, s%d, 15', sI, sT0)
        p('s_lshr_b32 s%d, s%d, 4', sT0, sT0)
        p('s_mul_i32 s%d, s%d, 43', sJ, sT0)
        p('s_lshr_b32 s%d, s%d, 7', sJ, sJ)
        p('s_mul_i32 s%d, s%d, 3', sT1, sJ)
        p('s_sub_u32 s%d, s%d, s%d', sC, sT0, sT1)
    else:
        p('s_mul_i32 s%d, s%d, 43', sT2, sT1)
        p('s_lshr_b32 s%d, s%d, 7', sT2, sT2)
        p('s_mul_i32 s%d, s%d, 3', sT3, sT2)
        p('s_sub_u32 s%d, s%d, s%d', sC, sT1, sT3)
        p('s_mul_i32 s%d, s%d, 10', sT0, sT0)
        p('s_add_u32 s%d, s%d, s%d', sT0, sT0, sT2)
        p('s_and_b32 s%d, s%d, 15', sI, sT0)
        p('s_lshr_b32 s%d, s%d, 4', sJ, sT0)
    p('v_lshrrev_b32 v1, 6, v0')
    p('v_readfirstlane_b32 s%d, v1', sW)
    p('v_and_b32 v0, 63, v0')
    p('s_waitcnt lgkmcnt(0)')
    for (d, n) in ((sX, T * D * 2), (sWS, WS_SIZE), (sDBG, 256)):
        p('s_and_b32 s%d, s%d, 0xffff', d + 1, d + 1)
        p('s_mov_b32 s%d, 0x%x', d + 2, n)
        p('s_mov_b32 s%d, 0x20000', d + 3)

def ln_stats(p, xr, vt, o):
    s0, s1, q0, q1, one = vt, vt + 2, vt + 1, vt + 3, vt + 4
    p('v_mov_b32 v%d, 0x3f803f80', one)
    for k, r in enumerate(xr):
        s = s0 if k % 2 == 0 else s1; q = q0 if k % 2 == 0 else q1
        if k < 2:
            p('v_dot2_f32_bf16 v%d, v%d, v%d, 0', s, r, one)
            p('v_dot2_f32_bf16 v%d, v%d, v%d, 0', q, r, r)
        else:
            p('v_dot2_f32_bf16 v%d, v%d, v%d, v%d', s, r, one, s)
            p('v_dot2_f32_bf16 v%d, v%d, v%d, v%d', q, r, r, q)
    p('v_add_f32 v%d, v%d, v%d', s0, s0, s1)
    p('v_add_f32 v%d, v%d, v%d', q0, q0, q1)
    p('v_mov_b32 v%d, v%d', s1, s0)
    p('v_mov_b32 v%d, v%d', q1, q0)
    p('v_permlane32_swap_b32 v%d, v%d', s0, s1)
    p('v_permlane32_swap_b32 v%d, v%d', q0, q1)
    p('v_add_f32 v%d, v%d, v%d', s0, s0, s1)
    p('v_add_f32 v%d, v%d, v%d', q0, q0, q1)
    p('v_mul_f32 v%d, 0x%x, v%d', s0, f2u(1.0 / D), s0)
    p('v_mul_f32 v%d, 0x%x, v%d', q0, f2u(1.0 / D), q0)
    p('v_fma_f32 v%d, -v%d, v%d, v%d', q0, s0, s0, q0)
    p('v_max_f32 v%d, 0, v%d', q0, q0)

def mlp_path(p, o, tail):
    RA = lambda t, pb: 1 + t * 3 + pb
    vW1, vW2, vL16, vBIAS, vC3 = 7, 8, 9, 10, 11
    vT = 12
    vSC, vSH, vPOLL, vPA = 20, 21, 22, 23
    ACC = lambda buf, tile: 24 + buf * 32 + tile * 16
    HO = lambda buf: 88 + buf * 16
    XV = 120; NXV = 34
    aO = 0; aA = 96; aX = 112; aR = 120
    def xfrag(s): return ('v[%d:%d]' % (XV + 4 * s, XV + 4 * s + 3)) if s < NXV else ('a[%d:%d]' % (aX + 4 * (s - NXV), aX + 4 * (s - NXV) + 3))
    def xraw(s): return XV + 4 * s if s < NXV else HO(0) + 4 * (s - NXV)
    def rem(idx, q):
        if idx < 8: return 'a[%d:%d]' % (aR + 16 * idx + 4 * q, aR + 16 * idx + 4 * q + 3)
        b = XV + 16 * (idx - 8) + 4 * q
        return 'v[%d:%d]' % (b, b + 3)

    p.label('L_mlp')
    p('v_and_b32 v1, 31, v0')
    p('v_mul_u32_u24 v1, 1152, v1')
    p('v_lshrrev_b32 v2, 5, v0')
    p('v_lshl_add_u32 v1, v2, 4, v1')
    p('s_lshl_b32 s%d, s%d, 2', sT0, sI)
    p('s_add_u32 s%d, s%d, s%d', sT0, sT0, sW)
    p('s_mul_i32 s%d, s%d, %d', sT0, sT0, 32 * 1152)
    for s in range(36):
        r = xraw(s)
        p('buffer_load_dwordx4 v[%d:%d], v1, s[%d:%d], s%d offen offset:%d', r, r + 3, sX, sX + 3, sT0, 32 * s)
    srd(p, sW1, sW1, D * F * 2); srd(p, sW2, sW2, D * F * 2); srd(p, sMISC, sMISC, F * 2)
    p('s_mul_i32 s%d, s%d, 1152', sT0, sJ)
    p('s_mul_i32 s%d, s%d, 384', sT1, sC)
    p('s_add_u32 s%d, s%d, s%d', sT2, sT0, sT1)
    p('s_lshl_b32 s%d, s%d, 1', sT3, sT2)
    p('s_lshl_b32 s%d, s%d, 8', sCNT, sW)
    p('s_add_u32 s%d, s%d, s%d', sT3, sT3, sCNT)
    p('v_lshlrev_b32 v3, 2, v0')
    p('buffer_load_dword v%d, v3, s[%d:%d], s%d offen', vT + 7, sMISC, sMISC + 3, sT3)
    p('s_mul_i32 s%d, s%d, %d', sW1B, sW, 48 * 9216)
    p('s_lshl_b32 s%d, s%d, 1', sT3, sT2)
    p('s_add_u32 s%d, s%d, s%d', sW1B, sW1B, sT3)
    p('s_lshl_b32 s%d, s%d, 4', sT3, sW)
    p('s_add_u32 s%d, s%d, s%d', sT0, sT0, sT3)
    p('s_mul_i32 s%d, s%d, 1152', sT0, sT0)
    p('s_add_u32 s%d, s%d, s%d', sT0, sT0, sT1)
    p('s_lshl_b32 s%d, s%d, 2', sT1, sI)
    p('s_add_u32 s%d, s%d, s%d', sT1, sT1, sJ)
    p('s_mul_i32 s%d, s%d, 3', sT1, sT1)
    for k in range(3):
        p('s_add_u32 s%d, s%d, %d', sT2, sC, k)
        p('s_cmp_ge_u32 s%d, 3', sT2)
        p('s_cselect_b32 s%d, 3, 0', sT3)
        p('s_sub_u32 s%d, s%d, s%d', sT2, sT2, sT3)
        p('s_mul_i32 s%d, s%d, %d', sT3, sT2, 384 * 1152)
        p('s_add_u32 s%d, s%d, s%d', sW2B + k, sT0, sT3)
        p('s_add_u32 s%d, s%d, s%d', sT2, sT2, sT1)
        if k == 0:
            p('s_lshl_b32 s%d, s%d, 7', sFLAG, sT2)
        else:
            p('s_lshl_b32 s%d, s%d, 7', sT3, sT2)
            p('v_mov_b32 v%d, s%d', vT + k, sT3)
        p('s_mul_i32 s%d, s%d, 98304', sT2, sT2)
        p('s_lshl_b32 s%d, s%d, 12', sT3, sW)
        p('s_add_u32 s%d, s%d, s%d', sT2, sT2, sT3)
        p('s_add_u32 s%d, s%d, 0x%x', sHOWN + k, sT2, WS_H)
    p('v_cmp_gt_u32 vcc, 32, v0')
    p('v_cndmask_b32 v%d, v%d, v%d, vcc', vPA, vT + 2, vT + 1)
    p('s_mul_i32 s%d, s%d, 6144', sLW1, sW)
    p('s_lshl_b32 s%d, s%d, 11', sLW2, sW)
    p('v_lshrrev_b32 v2, 3, v0')
    p('v_and_b32 v3, 7, v0')
    p('v_lshrrev_b32 v4, 2, v0')
    p('v_and_b32 v4, 4, v4')
    p('v_xor_b32 v3, v3, v4')
    p('v_lshlrev_b32 v3, 4, v3')
    p('v_mul_u32_u24 v%d, 1152, v2', vW2)
    p('v_add_u32 v%d, v%d, v3', vW2, vW2)
    p('v_and_b32 v4, 3, v2')
    p('v_lshrrev_b32 v2, 2, v2')
    p('v_lshl_add_u32 v2, v2, 3, v4')
    p('v_mul_u32_u24 v%d, 9216, v2', vW1)
    p('v_add_u32 v%d, v%d, v3', vW1, vW1)

    slots = []
    for b in range(6):
        slots += [('G1', b, t) for t in range(3)]
        if b >= 1: slots.append(('G2', 0, b - 1))
    remo = [('G2', 1 + (k % 2), k // 2) for k in range(12)]
    slots += remo[:3] + [('G2', 0, 5)] + remo[3:]
    assert len(slots) == 36

    def dma(n, q):
        kind, a_, b_ = slots[n]
        buf = (n % NBUF) * SLOT
        if kind == 'G1':
            b, t = a_, b_
            row = 192 * t + 16 * (q // 2) + 4 * (q % 2)
            p('s_add_u32 m0, s%d, %d', sLW1, buf + q * 1024)
            p('s_add_u32 s%d, s%d, %d', sT0, sW1B, row * 9216 + 128 * b)
            p('buffer_load_dwordx4 v%d, s[%d:%d], s%d offen lds', vW1, sW1, sW1 + 3, sT0, tag=('dma', n))
        else:
            m, b = a_, b_
            e, g = q // 2, q % 2
            p('s_add_u32 m0, s%d, %d', sLW2, buf + e * 8192 + g * 1024)
            p('s_add_u32 s%d, s%d, %d', sT0, sW2B + m, (64 * b + 8 * g) * 1152 + 128 * e)
            p('buffer_load_dwordx4 v%d, s[%d:%d], s%d offen lds', vW2, sW2, sW2 + 3, sT0, tag=('dma', n))
    for n in range(4):
        for q in range(6): dma(n, q)
    p('v_lshrrev_b32 v2, 5, v0')
    p('v_lshlrev_b32 v%d, 4, v2', vBIAS)
    p('v_add_u32 v%d, %d, v%d', vBIAS, LDS_BIAS, vBIAS)
    p('v_lshlrev_b32 v2, 2, v2')
    p('v_bfe_u32 v3, v0, 2, 2')
    p('v_add_u32 v2, v2, v3')
    p('v_lshlrev_b32 v2, 7, v2')
    p('v_and_b32 v3, 3, v0')
    p('v_lshl_add_u32 v2, v3, 3, v2')
    p('v_bfe_u32 v3, v0, 4, 1')
    p('v_lshl_add_u32 v2, v3, 5, v2')
    p('v_bfe_u32 v3, v0, 3, 1')
    p('v_lshl_add_u32 v%d, v3, 6, v2', vT)
    p('v_xor_b32 v%d, 64, v%d', vT + 1, vT)
    for t in range(2):
        for pb in range(3):
            p('v_add_u32 v%d, %d, v%d', RA(t, pb), pb * 2 * SLOT, vT + t)
    p('v_lshlrev_b32 v%d, 4, v0', vL16)
    K = math.sqrt(2.0 / math.pi)
    c1 = -2.0 * K * math.log2(math.e); c3 = c1 * 0.044715
    p('v_mov_b32 v%d, 0x%x', vC3, f2u(c3))
    p('s_mov_b32 s%d, 0x%x', sC1, f2u(c1))
    p('s_mov_b32 s%d, 0xffff0000', sMASK)
    p('s_mul_i32 s%d, s%d, 3', sT1, sI)
    p('s_add_u32 s%d, s%d, s%d', sT1, sT1, sC)
    p('s_lshl_b32 s%d, s%d, 2', sT1, sT1)
    p('s_add_u32 s%d, s%d, s%d', sT1, sT1, sW)
    p('s_mul_i32 s%d, s%d, 12288', sT1, sT1)
    p('s_mul_i32 s%d, s%d, %d', sT2, sJ, PART_SZ)
    p('s_add_u32 s%d, s%d, s%d', sT1, sT1, sT2)
    p('s_add_u32 s%d, s%d, 0x%x', sPART, sT1, WS_PART)
    stamp(p, o, 1)
    xr = [xraw(s) + k for s in range(36) for k in range(4)]
    ln_stats(p, xr, vT, o)
    stamp(p, o, 2)
    p('v_add_f32 v%d, 0x%x, v%d', vT + 2, f2u(1e-5), vT + 1)
    p('v_rsq_f32 v%d, v%d', vT + 2, vT + 2)
    p('v_mul_f32 v%d, v%d, v%d', vT + 3, vT + 2, vT + 2)
    p('v_mov_b32 v%d, 0x%x', vT + 4, f2u(1e-5))
    p('v_fma_f32 v%d, v%d, v%d, v%d', vT + 3, vT + 3, vT + 1, vT + 4)
    p('v_rsq_f32 v%d, v%d', vT + 3, vT + 3)
    p('v_mul_f32 v%d, v%d, v%d', vSC, vT + 2, vT + 3)
    p('v_mul_f32 v%d, v%d, v%d', vSH, vT, vSC)
    p('v_sub_f32 v%d, 0, v%d', vSH, vSH)
    p('v_lshlrev_b32 v%d, 16, v%d', vT + 4, vT + 7)
    p('v_and_b32 v%d, s%d, v%d', vT + 5, sMASK, vT + 7)
    p('s_lshl_b32 s%d, s%d, 9', sT0, sW)
    p('s_add_u32 s%d, s%d, %d', sT0, sT0, LDS_BIAS)
    p('v_lshl_add_u32 v%d, v0, 3, s%d', vT + 6, sT0)
    p('ds_write_b64 v%d, v[%d:%d]', vT + 6, vT + 4, vT + 5)
    p('s_waitcnt lgkmcnt(0)')

    tl = Timeline(p, o.dist, lambda g: 40 if g < 72 else o.budget)
    tl.nomfma = 'm' in o.drop; tl.nords = 'r' in o.drop; tl.novalu = 'v' in o.drop
    for s in range(36):
        for k in range(4):
            r = xraw(s) + k
            t0, t1 = vT + 2 * (k % 2), vT + 2 * (k % 2) + 1
            tl.job(Ins('v_lshlrev_b32 v%d, 16, v%d' % (t0, r)), -1)
            tl.job(Ins('v_and_b32 v%d, s%d, v%d' % (t1, sMASK, r)), -1)
            tl.job(Ins('v_fma_f32 v%d, v%d, v%d, v%d' % (t0, t0, vSC, vSH)), -1)
            tl.job(Ins('v_fma_f32 v%d, v%d, v%d, v%d' % (t1, t1, vSC, vSH)), -1)
            last = (k == 3)
            if s < NXV:
                tl.job(Ins('v_cvt_pk_bf16_f32 v%d, v%d, v%d' % (r, t0, t1), gives=('y', s) if last else None), -1)
            else:
                tl.job(Ins('v_cvt_pk_bf16_f32 v%d, v%d, v%d' % (t0, t0, t1)), -1)
                tl.job(Ins('v_accvgpr_write_b32 a%d, v%d' % (aX + 4 * (s - NXV) + k, t0), gives=('y', s) if last else None), -1)
    if not o.jitnorm:
        while tl.q: tl.pop()
    stamp(p, o, 3)
    first_g2 = [True] * 6
    g1end = {}
    for n, (kind, a_, b_) in enumerate(slots):
        buf = n % NBUF
        base = (buf % 2) * SLOT; pb = buf // 2
        order = []
        if kind == 'G1': order = [(s, t) for s in range(12) for t in range(2)]
        elif n == 35: order = [(ks, dt) for dt in range(6) for ks in range(4)]
        else: order = [(ks, dt) for ks in range(4) for dt in range(6)]
        for k, (u0, u1) in enumerate(order):
            g = len(tl.gaps)
            A = aA + 4 * (g % 4)
            if kind == 'G1':
                b, t3 = a_, b_; s, t = u0, u1
                off = base + s * 2048
                acc = ACC(b % 2, t)
                needs = [('y', 12 * t3 + s)] if b == 0 else []
                m = Ins('v_mfma_f32_32x32x16_bf16 v[%d:%d], a[%d:%d], %s, v[%d:%d]' % (acc, acc + 15, A, A + 3, xfrag(12 * t3 + s), acc, acc + 15), needs=needs)
                g1end[b] = g
            else:
                mm, b = a_, b_; ks, dt = u0, u1; t = dt % 2
                off = base + (dt // 2) * 8192 + ks * 2048
                acc = aO + 16 * dt
                if mm == 0:
                    h = HO(b % 2) + 4 * ks; B = 'v[%d:%d]' % (h, h + 3); needs = [('h', b, ks)]
                else:
                    B = rem(2 * b + mm - 1, ks); needs = []
                C = '0' if first_g2[dt] else 'a[%d:%d]' % (acc, acc + 15)
                first_g2[dt] = False
                m = Ins('v_mfma_f32_32x32x16_bf16 a[%d:%d], a[%d:%d], %s, %s' % (acc, acc + 15, A, A + 3, B, C), needs=needs)
            rds = [Ins('ds_read_b64_tr_b16 a[%d:%d], v%d offset:%d' % (A + 2 * u, A + 2 * u + 1, RA(t, pb), off + 1024 * u)) for u in range(2)]
            tl.gaps.append((m, rds, n, k == 0))
    def bias_ev(b, part):
        def f():
            tl.force([('gelu', b - 2)] if b >= 2 else [])
            t, g4 = part // 4, part % 4
            r = ACC(b % 2, t) + 4 * g4
            p('ds_read_b128 v[%d:%d], v%d offset:%d', r, r + 3, vBIAS, (64 * b + 32 * t + 8 * g4) * 4)
        return f
    slot_of = {s: n for n, s in enumerate(slots)}
    for b in range(6):
        g0 = 24 * slot_of[('G1', b, 0)]
        for part in range(8):
            tl.at(-1 if b == 0 else g0 - 11 + part, bias_ev(b, part))
    for b in range(6):
        e = g1end[b] + 2
        for t in range(2):
            for pr in range(8):
                x0 = ACC(b % 2, t) + 2 * pr; x1 = x0 + 1
                t0 = vT + 2 * (pr % 2); t1 = t0 + 1
                P = HO(b % 2) + 8 * t + pr
                for (a, x) in ((t0, x0), (t1, x1)): tl.job(Ins('v_mul_f32 v%d, v%d, v%d' % (a, x, x)), e)
                for (a, x) in ((t0, x0), (t1, x1)): tl.job(Ins('v_fma_f32 v%d, v%d, v%d, s%d' % (a, a, vC3, sC1)), e)
                for (a, x) in ((t0, x0), (t1, x1)): tl.job(Ins('v_mul_f32 v%d, v%d, v%d' % (a, a, x)), e)
                for (a, x) in ((t0, x0), (t1, x1)): tl.job(Ins('v_exp_f32 v%d, v%d' % (a, a)), e)
                for (a, x) in ((t0, x0), (t1, x1)): tl.job(Ins('v_add_f32 v%d, 1.0, v%d' % (a, a)), e)
                for (a, x) in ((t0, x0), (t1, x1)): tl.job(Ins('v_rcp_f32 v%d, v%d' % (a, a)), e)
                for (a, x) in ((t0, x0), (t1, x1)): tl.job(Ins('v_mul_f32 v%d, v%d, v%d' % (a, a, x)), e)
                ks = 2 * t + pr // 4
                tl.job(Ins('v_cvt_pk_bf16_f32 v%d, v%d, v%d' % (P, t0, t1), gives=('h', b, ks) if pr % 4 == 3 else None), e)
                if pr % 4 == 3:
                    h = HO(b % 2) + 4 * ks
                    tl.job(Ins('s_add_u32 s%d, s%d, %d' % (sT1, sHOWN, b * 16384)), e, cost=0)
                    tl.job(Ins('buffer_store_dwordx4 v[%d:%d], v%d, s[%d:%d], s%d offen offset:%d sc1' % (h, h + 3, vL16, sWS, sWS + 3, sT1, 1024 * ks),
                               tag=('hst', b), gives=('gelu', b) if ks == 3 else None), e, cost=4)
    for n in range(0 if 'd' in o.drop else 32):
        g0 = 24 * n - o.dist
        for q in range(6):
            tl.at(max(g0 + 1 + o.dmastep * q, 0), (lambda n=n, q=q: dma(n + 4, q)))
    pubs = {o.pub[0]: (2, 3), o.pub[1]: (4, 5), o.pub[2]: (5, 6)}
    def barrier(n):
        p.waitvm(('dma', n))
        if n in pubs and not o.nowait:
            tl.force([('gelu', pubs[n][0])])
            p.waitvm(('hst', pubs[n][0]))
        p('s_barrier')
        if n in pubs and not o.nowait:
            lab = 'L_pub%d' % n
            p('s_cmp_lg_u32 s%d, 0', sW)
            p('s_cbranch_scc1 %s', lab)
            p('s_add_u32 s%d, s%d, %d', sT2, sNONCE, pubs[n][1])
            p.raw('    v_mov_b32 v%d, s%d' % (vSC, sT2))
            p.raw('    s_mov_b64 exec, 1')
            p.raw('    buffer_store_dword v%d, off, s[%d:%d], s%d sc1' % (vSC, sWS, sWS + 3, sFLAG))
            p.raw('    s_mov_b64 exec, -1')
            p.label(lab)
        if n % 2 == 0: stamp(p, o, 4 + n // 2)
    def fallback(name, load, check):
        tail.append('%s:' % name)
        tail.append('    s_mov_b32 s%d, 20000' % sCNT)
        tail.append('%s_l:' % name)
        tail.append('    s_sleep 2')
        tail.append('    ' + load)
        tail.append('    s_waitcnt vmcnt(0)')
        for c in check: tail.append('    ' + c)
        tail.append('    s_nop 4')
        tail.append('    s_cbranch_vccz %s_b' % name)
        tail.append('    s_sub_u32 s%d, s%d, 1' % (sCNT, sCNT))
        tail.append('    s_cmp_lg_u32 s%d, 0' % sCNT)
        tail.append('    s_cbranch_scc1 %s_l' % name)
        tail.append('    s_branch %s_b' % name)
    if not o.nowait:
        nl = 'buffer_load_dword v%d, off, s[%d:%d], 0 sc1' % (vPOLL, sDBG, sDBG + 3)
        nc = ['v_cmp_eq_u32 vcc, 0, v%d' % vPOLL]
        tl.at(24 * 5 + 12, lambda: p(nl))
        def chk_nonce():
            for c in nc: p(c)
            p('s_cbranch_vccnz L_fn')
            p.label('L_fn_b')
            p('v_readfirstlane_b32 s%d, v%d', sNONCE, vPOLL)
            fallback('L_fn', nl, nc)
        tl.at(24 * 7 + 12, chk_nonce)
    polls = [(o.poll[0], 3, [0, 1, 2]), (o.poll[1], 5, [3, 4]), (o.poll[2], 6, [5])]
    def rload(idx, q):
        b, mm = idx // 2, idx % 2
        p('s_add_u32 s%d, s%d, %d', sT2, sHREM + mm, b * 16384)
        p('buffer_load_dwordx4 %s, v%d, s[%d:%d], s%d offen offset:%d sc1', rem(idx, q), vL16, sWS, sWS + 3, sT2, 1024 * q)
    for pi, (g, needc, blks) in enumerate(polls):
        pl = 'buffer_load_dword v%d, v%d, s[%d:%d], 0 offen sc1' % (vPOLL, vPA, sWS, sWS + 3)
        pc = ['s_add_u32 s%d, s%d, %d' % (sT2, sNONCE, needc),
              'v_subrev_u32 v%d, s%d, v%d' % (vPOLL, sT2, vPOLL),
              'v_cmp_lt_u32 vcc, %d, v%d' % (6 - needc, vPOLL)]
        if not o.nowait:
            tl.at(g, lambda pl=pl: p(pl))
            def chk(pi=pi, pl=pl, pc=pc):
                for c in pc: p(c)
                p('s_cbranch_vccnz L_fp%d', pi)
                p.label('L_fp%d_b' % pi)
                fallback('L_fp%d' % pi, pl, pc)
            tl.at(g + o.polllag, chk)
        k = 0
        for b in blks:
            for mm in range(2):
                for q in range(4):
                    tl.at(g + o.polllag + 1 + k * o.rstep, (lambda idx=2 * b + mm, q=q: rload(idx, q)))
                    k += 1
    for dt in range(6):
        e = 840 + 4 * dt + 5
        for half in range(2):
            Pq = vT + 4 if half else vT
            st = ACC(0, 0) + (dt * 2 + half) * 4
            for k in range(4):
                a0 = aO + 16 * dt + 8 * half + 2 * k
                tl.job(Ins('v_accvgpr_read_b32 v%d, a%d' % (vT + 2 * (k % 2), a0)), e)
                tl.job(Ins('v_accvgpr_read_b32 v%d, a%d' % (vT + 2 * (k % 2) + 1, a0 + 1)), e)
                tl.job(Ins('v_cvt_pk_bf16_f32 v%d, v%d, v%d' % (st + k, vT + 2 * (k % 2), vT + 2 * (k % 2) + 1)), e)
            tl.job(Ins('s_add_u32 s%d, s%d, %d' % (sT1, sPART, (dt * 2 + half) * 1024)), e, cost=0)
            tl.job(Ins('buffer_store_dwordx4 v[%d:%d], v%d, s[%d:%d], s%d offen' % (st, st + 3, vL16, sWS, sWS + 3, sT1)), e, cost=4)
    tl.run(barrier)
    print('mlp forced valu cycles', tl.forced, file=sys.stderr)
    dump_stamps(p, o, vT, vT + 1)
    p('s_endpgm')

def main_kernel(o):
    p = Prog(); tail = []
    name = 'main_kernel'
    p.raw('.globl %s\n.p2align 8\n.type %s,@function' % (name, name))
    p.label(name)
    common_entry(p, o)
    if not o.nowait:
        p('s_or_b32 s%d, s2, s%d', sT0, sW)
        p('s_cmp_lg_u32 s%d, 0', sT0)
        p('s_cbranch_scc1 L_non')
        p.raw('    s_memrealtime s[%d:%d]' % (sT2, sT3))
        p.raw('    s_waitcnt lgkmcnt(0)')
        p.raw('    s_lshl_b32 s%d, s%d, 3' % (sT2, sT2))
        p.raw('    s_or_b32 s%d, s%d, 0x80000000' % (sT2, sT2))
        p.raw('    v_mov_b32 v1, s%d' % sT2)
        p.raw('    s_mov_b64 exec, 1')
        p.raw('    buffer_store_dword v1, off, s[%d:%d], 0 sc1' % (sDBG, sDBG + 3))
        p.raw('    s_mov_b64 exec, -1')
        p.raw('    s_nop 1')
        p.label('L_non')
    p('s_cmp_eq_u32 s%d, 4', sJ)
    p('s_cbranch_scc1 L_end')
    mlp_path(p, o, tail)
    p.label('L_end')
    p('s_endpgm')
    st = {}
    txt = p.finalize(st) + '\n'.join(tail) + '\n'
    print(st, file=sys.stderr)
    return txt

if __name__ == '__main__':
    ap = argparse.ArgumentParser()
    ap.add_argument('-o', default='main.s')
    ap.add_argument('--map', default='A')
    ap.add_argument('--drop', default='')
    ap.add_argument('--stamps', type=int, default=0)
    ap.add_argument('--nowait', type=int, default=0)
    ap.add_argument('--jitnorm', type=int, default=1)
    ap.add_argument('--dist', type=int, default=3)
    ap.add_argument('--budget', type=int, default=16)
    ap.add_argument('--dmastep', type=int, default=2)
    ap.add_argument('--rstep', type=int, default=2)
    ap.add_argument('--polllag', type=int, default=24)
    ap.add_argument('--pub', default='16,24,28')
    ap.add_argument('--poll', default='456,624,720')
    o = ap.parse_args()
    o.pub = [int(x) for x in o.pub.split(',')]; o.poll = [int(x) for x in o.poll.split(',')]
    body = main_kernel(o)
    launches = [('main_kernel', 240, 256, LDS_TOTAL)]
    descs = [descriptor('main_kernel', 512, 102, 256)]
    open(o.o, 'w').write(file_text(launches, body, descs))
```

```python
import re

REG_RE = re.compile(r'^(-?\|?)([vas])(\d+)\|?$')
RNG_RE = re.compile(r'^([vas])\[(\d+):(\d+)\]$')
TRANS = ('v_exp_f32', 'v_log_f32', 'v_rcp_f32', 'v_rsq_f32', 'v_sqrt_f32', 'v_sin_f32', 'v_cos_f32')

def regs_of(tok):
    tok = tok.strip()
    m = RNG_RE.match(tok)
    if m:
        return [m.group(1) + str(i) for i in range(int(m.group(2)), int(m.group(3)) + 1)]
    m = REG_RE.match(tok)
    if m:
        return [m.group(2) + m.group(3)]
    if tok in ('vcc', 'exec', 'm0'):
        return [tok]
    if tok in ('vcc_lo', 'vcc_hi'): return ['vcc']
    if tok in ('exec_lo', 'exec_hi'): return ['exec']
    return []

class Ins:
    __slots__ = ('text', 'op', 'kind', 'rd', 'wr', 'srcc', 'tag', 'cost', 'needs', 'gives', 'wide', 'sdata')
    def __init__(self, text, tag=None, needs=(), gives=None):
        self.text = text; self.tag = tag; self.needs = tuple(needs); self.gives = gives
        self.srcc = set(); self.wide = False; self.sdata = set()
        t = text.split(';')[0].strip()
        parts = t.split(None, 1)
        op = parts[0]; self.op = op
        rest = parts[1] if len(parts) > 1 else ''
        ops = [o.strip() for o in rest.split(',')] if rest else []
        mods = []
        if ops:
            sp = ops[-1].split()
            ops[-1] = sp[0]; mods = sp[1:]
        R = [regs_of(o) for o in ops]
        flat = lambda L: set(x for l in L for x in l)
        rd = set(); wr = set(); cost = 4
        if op.startswith('v_mfma'):
            kind = 'mfma'; wr = set(R[0]); rd = flat(R[1:4]); self.srcc = set(R[3]); cost = 0
        elif op.startswith('v_'):
            base = op.replace('_e32', '').replace('_e64', '').replace('_dpp', '').replace('_sdwa', '')
            kind = 'trans' if base in TRANS else 'valu'
            cost = 8 if kind == 'trans' else 4
            if base.startswith('v_permlane') and 'swap' in base:
                wr = flat(R); rd = flat(R); kind = 'perm'
            elif base.startswith('v_cmpx'):
                wr = {'exec'} | set(R[0]); rd = flat(R[1:])
            else:
                wr = set(R[0]); rd = flat(R[1:])
                if base.startswith(('v_fmac', 'v_mac', 'v_dot2c', 'v_writelane')): rd |= set(R[0])
                if base.endswith('_co_u32') : wr |= set(R[1]); rd = flat(R[2:])
                if base.startswith('v_cndmask') and len(ops) == 3: rd.add('vcc')
            if base.startswith('v_dot'): kind = 'dot'
            if 'dpp' in op or any(m.startswith(('row_', 'quad_perm', 'wave_')) for m in mods):
                kind = 'dpp'; rd |= set(R[0])
            if base.startswith(('v_readfirstlane', 'v_readlane')): kind = 'rdlane'
            rd.add('exec')
        elif op.startswith('ds_'):
            if op.startswith(('ds_read', 'ds_bpermute', 'ds_swizzle', 'ds_permute')):
                kind = 'ds'; wr = set(R[0]); rd = flat(R[1:])
            else:
                kind = 'ds'; rd = flat(R)
            cost = 0
        elif op.startswith('buffer_'):
            cost = 0
            if 'lds' in mods:
                kind = 'dma'; rd = flat(R) | {'m0'}
            elif op.startswith('buffer_load'):
                kind = 'vmem'; wr = set(R[0]); rd = flat(R[1:])
            elif op.startswith('buffer_store'):
                kind = 'vmem'; rd = flat(R); self.wide = op.endswith(('x3', 'x4')); self.sdata = set(R[0])
            elif op.startswith('buffer_atomic'):
                kind = 'vmem'; rd = flat(R)
                if 'sc0' in mods: wr = set(R[0])
            else:
                kind = 'vmem'
        elif op.startswith('s_'):
            cost = 0
            if op.startswith(('s_load', 's_memtime', 's_memrealtime')):
                kind = 'smem'; wr = set(R[0]); rd = flat(R[1:])
            elif op.startswith(('s_cmp', 's_waitcnt', 's_barrier', 's_branch', 's_cbranch', 's_nop', 's_sleep',
                                's_setprio', 's_endpgm', 's_bitcmp')):
                kind = 'salu'; rd = flat(R)
            else:
                kind = 'salu'; wr = set(R[0]); rd = flat(R[1:])
                if 'saveexec' in op: wr.add('exec')
        else:
            raise ValueError('unknown op: ' + text)
        self.kind = kind; self.rd = rd; self.wr = wr; self.cost = cost

VALUK = ('valu', 'trans', 'perm', 'dot', 'dpp', 'rdlane')

class Prog:
    def __init__(self):
        self.items = []
    def __call__(self, fmt, *a, **kw):
        t = fmt % a if a else fmt
        i = Ins(t, **kw); self.items.append(i); return i
    def add(self, ins): self.items.append(ins)
    def label(self, n): self.items.append(('label', n))
    def c(self, t): self.items.append(('c', t))
    def raw(self, t): self.items.append(('raw', t))
    def waitvm(self, tag): self.items.append(('waitvm', tag))
    def waitds(self, tag): self.items.append(('waitds', tag))
    def waitregs(self, regs): self.items.append(('waitregs', set(regs)))
    def drain(self): self.items.append(('drain', None))

    def finalize(self, stats=None):
        out = []
        vmq = []
        dsq = []
        smem = set()
        hist = []
        nnop = 0; nwait = 0
        def emit_wait(v=None, l=None):
            nonlocal vmq, dsq, nwait
            p = []
            if v is not None and v < len(vmq):
                v = min(v, 63); p.append('vmcnt(%d)' % v); vmq = vmq[len(vmq) - v:] if v else []
            if l is not None and (l < len(dsq) or (l == 0 and smem)):
                l = min(l, 15); p.append('lgkmcnt(%d)' % l); dsq = dsq[len(dsq) - l:] if l else []
                if l == 0: smem.clear()
            if p:
                out.append('    s_waitcnt ' + ' '.join(p)); hist.append((None, 1)); nwait += 1
        def need(q, regs):
            n = None
            for k, (w, _) in enumerate(q):
                if w & regs: n = len(q) - 1 - k
            return n
        def needtag(q, tag):
            n = None
            for k, (_, t) in enumerate(q):
                if t == tag: n = len(q) - 1 - k
            return n
        for it in self.items:
            if isinstance(it, tuple):
                k, x = it
                if k == 'label': out.append(x + ':')
                elif k == 'c': out.append('    ; ' + x)
                elif k == 'raw': out.append(x)
                elif k == 'waitvm': emit_wait(v=needtag(vmq, x))
                elif k == 'waitds': emit_wait(l=needtag(dsq, x))
                elif k == 'waitregs': emit_wait(need(vmq, x), 0 if (smem & x) else need(dsq, x))
                elif k == 'drain': emit_wait(0, 0)
                continue
            I = it
            touch = I.rd | I.wr
            emit_wait(need(vmq, touch), 0 if (smem & touch) else need(dsq, touch))
            req = 0; dist = 0
            isv = I.kind in VALUK
            ismem = I.kind in ('ds', 'vmem', 'dma')
            for (P, st) in reversed(hist):
                if dist >= 16: break
                if P is not None:
                    w = 0
                    pv = P.kind in VALUK
                    if P.kind == 'mfma':
                        if I.kind == 'mfma':
                            if P.wr & (I.rd - I.srcc): w = 12
                            if P.wr & I.srcc and P.wr != I.srcc: w = max(w, 10)
                            if P.wr & I.wr and P.wr != I.srcc: w = max(w, 12)
                        elif (isv or ismem) and (P.wr & touch): w = 12
                        if isv and (P.srcc & I.wr): w = max(w, 7)
                        if ismem and (P.srcc & I.wr): w = max(w, 7)
                    if pv:
                        vw = set(r for r in P.wr if r[0] in 'va' and r not in ('vcc',))
                        sw = P.wr - vw
                        if I.kind == 'mfma' and (vw & I.rd): w = max(w, 3 if P.kind == 'dot' else 2)
                        if I.kind == 'mfma' and 'exec' in P.wr: w = max(w, 4)
                        if P.kind == 'trans' and isv and (vw & I.rd): w = max(w, 1)
                        if P.kind == 'dot' and (isv or ismem) and (vw & touch):
                            same = (I.kind == 'dot' and I.op == P.op and (vw & I.rd) <= I.wr)
                            if not same: w = max(w, 3)
                        if I.kind in ('perm', 'dpp') and (vw & I.rd): w = max(w, 2)
                        if I.kind == 'rdlane' and (vw & I.rd): w = max(w, 1)
                        if I.kind in ('vmem', 'dma') and (sw & I.rd): w = max(w, 5)
                        if isv and ((sw - {'exec'}) & I.rd): w = max(w, 4 if I.kind == 'rdlane' else 2)
                        if 'exec' in P.wr and I.kind in ('dpp',): w = max(w, 5)
                        if 'exec' in P.wr and I.kind in ('rdlane', 'perm'): w = max(w, 4)
                    if P.kind == 'salu' and 'm0' in P.wr and I.kind == 'dma': w = max(w, 1)
                    if P.wide and (P.sdata & I.wr): w = max(w, 2)
                    req = max(req, w - dist)
                dist += st
            if req > 0:
                out.append('    s_nop %d' % (req - 1)); hist.append((None, req)); nnop += req
            out.append('    ' + I.text)
            st = 1
            if I.op == 's_nop': st = int(I.text.split()[1]) + 1
            hist.append((I, st))
            if len(hist) > 40: hist = hist[-24:]
            if I.op == 's_waitcnt':
                m = re.search(r'vmcnt\((\d+)\)', I.text)
                if m:
                    v = int(m.group(1)); vmq = vmq[len(vmq) - v:] if (v and v < len(vmq)) else ([] if v == 0 else vmq)
                m = re.search(r'lgkmcnt\((\d+)\)', I.text)
                if m:
                    l = int(m.group(1)); dsq = dsq[len(dsq) - l:] if (l and l < len(dsq)) else ([] if l == 0 else dsq)
                    if l == 0: smem.clear()
            if I.kind in ('vmem', 'dma'): vmq.append((set(I.wr), I.tag))
            elif I.kind == 'ds': dsq.append((set(I.wr), I.tag))
            elif I.kind == 'smem': smem |= I.wr
        if stats is not None:
            stats['nop'] = nnop; stats['wait'] = nwait; stats['lines'] = len(out)
        return '\n'.join(out) + '\n'
```

```python
from common import *

LDS_TR = LDS_X
LDS_ET = LDS_X + 8192
LDS_GT = LDS_ET + 4096
OOB = 0x80000000

def ssm_path(p, o, tail):
    RA = [1, 2, 3, 4]
    vXE, vXO, vL16 = 5, 6, 7
    PA = lambda k: 8 + 4 * k
    vFM, vFN, vES, vEC, vTW, vTR, vLB0, vLB1, vEP = 32, 33, 34, 35, 36, 37, 38, 39, 40
    vLh, vLl, vLo, vIl, vI, vE, vSP, vLB = 41, 43, 45, 47, 51, 53, 55, 56
    TMP = 64; Z1 = 80
    R = lambda k: 96 + 32 * (k % 5)
    aA = 224; NA = 4; aH0 = 240
    sB, sCR, sCI = sW1, sW2, sW3
    sBB, sCB, sEB, sM0, sM1 = sW1B, sW2B, 34, 42, 46
    xraw = lambda s: (128 + 4 * s) if s < 32 else (Z1 + 4 * (s - 32))
    def tile(t):
        if t < 14: return ('a', 16 * t)
        return ('v', [R(1) + 16, R(2) + 16, Z1, R(3) + 16][t - 14])
    def hfrag(b, part, half):
        if b == 0: return ('a', aH0 + (8 if part == 0 else 0) + 4 * half)
        return ('v', R(b) + (8 if part == 0 else 0) + 4 * half)
    rng = lambda kr, n: '%s[%d:%d]' % (kr[0], kr[1], kr[1] + n - 1)

    p.label('L_ssm')
    p('s_load_dwordx2 s[84:85], s[0:1], 24')
    p('s_load_dwordx2 s[86:87], s[0:1], 32')
    p('s_load_dwordx2 s[%d:%d], s[0:1], 40', sCR, sCR + 1)
    p('s_load_dwordx2 s[%d:%d], s[0:1], 48', sCI, sCI + 1)
    p('s_load_dwordx2 s[88:89], s[0:1], 8')
    p('s_load_dwordx2 s[90:91], s[0:1], 16')
    p('s_load_dwordx2 s[%d:%d], s[0:1], 56', 92, 93)
    x_dma_setup(p, vXE, vXO, TMP, TMP + 1)
    p('v_and_b32 v%d, 31, v0', TMP)
    p('v_lshlrev_b32 v%d, 3, v%d', vEC, TMP)
    p('v_lshlrev_b32 v%d, 1, v%d', TMP + 1, TMP)
    p('s_mul_i32 s%d, s%d, 384', sT1, sC)
    for (src, k0) in ((88, 0), (90, 1), (92, 2)):
        p('s_mov_b32 s%d, s%d', sMISC, src)
        p('s_and_b32 s%d, s%d, 0xffff', sMISC + 1, src + 1)
        p('s_mov_b32 s%d, %d', sMISC + 2, D * 2)
        p('s_mov_b32 s%d, 0x20000', sMISC + 3)
        for k in range(6):
            p('buffer_load_ushort v%d, v%d, s[%d:%d], s%d offen offset:%d', PA(k) + k0, TMP + 1, sMISC, sMISC + 3, sT1, 64 * k)
    for m in range(3): x_dma(p, m, vXE, vXO)
    p('s_cmp_lt_u32 s%d, 2', sW)
    p('s_cselect_b32 s%d, s84, s86', sB)
    p('s_cselect_b32 s%d, s85, s87', sB + 1)
    srd(p, sB, D * D * 2); srd(p, sCR, D * D * 2); srd(p, sCI, D * D * 2)
    if o.touch:
        p('s_mul_i32 s%d, s%d, 192', sT0, sC)
        p('s_mul_i32 s%d, s%d, 12', sT2, sI)
        p('s_add_u32 s%d, s%d, s%d', sT0, sT0, sT2)
        p('s_mul_i32 s%d, s%d, 1152', sT0, sT0)
        p('s_and_b32 s%d, s%d, 1', sT2, sW)
        p('s_mul_i32 s%d, s%d, %d', sT2, sT2, 54 * 128)
        p('s_add_u32 s%d, s%d, s%d', sT0, sT0, sT2)
        p('v_min_u32 v%d, 53, v0', TMP + 2)
        p('v_lshlrev_b32 v%d, 7, v%d', TMP + 2, TMP + 2)
        p('buffer_load_dword v%d, v%d, s[%d:%d], s%d offen', vLB + 1, TMP + 2, sB, sB + 3, sT0)
        p('v_min_u32 v%d, 26, v0', TMP + 2)
        p('v_mul_u32_u24 v%d, 43, v%d', TMP + 3, TMP + 2)
        p('v_lshrrev_b32 v%d, 7, v%d', TMP + 3, TMP + 3)
        p('v_mul_u32_u24 v%d, %d, v%d', TMP + 3, 1152 - 384, TMP + 3)
        p('v_lshl_add_u32 v%d, v%d, 7, v%d', TMP + 2, TMP + 2, TMP + 3)
        p('s_lshl_b32 s%d, s%d, 2', sT0, sI)
        p('s_add_u32 s%d, s%d, s%d', sT0, sT0, sW)
        p('s_mul_i32 s%d, s%d, %d', sT0, sT0, 9 * 1152)
        p('s_add_u32 s%d, s%d, s%d', sT0, sT0, sT1)
        p('buffer_load_dword v%d, v%d, s[%d:%d], s%d offen', vLB + 2, TMP + 2, sCR, sCR + 3, sT0)
        p('buffer_load_dword v%d, v%d, s[%d:%d], s%d offen', vLB + 3, TMP + 2, sCI, sCI + 3, sT0)
        code_touch(p, 'L_ssm', 'L_ssm_end', vLB + 4, TMP + 2, sMISC)
    p('s_and_b32 s%d, s%d, 1', sT0, sW)
    p('s_lshl_b32 s%d, s%d, 4', sT0, sT0)
    p('s_mul_i32 s%d, s%d, 192', sT2, sC)
    p('s_add_u32 s%d, s%d, s%d', sT2, sT2, sT0)
    p('s_mul_i32 s%d, s%d, 1152', sBB, sT2)
    p('s_lshr_b32 s%d, s%d, 1', sT2, sW)
    p('s_mul_i32 s%d, s%d, 96', sT2, sT2)
    p('s_add_u32 s%d, s%d, s%d', sT2, sT2, sT0)
    p('s_mul_i32 s%d, s%d, 1152', sCB, sT2)
    p('s_add_u32 s%d, s%d, s%d', sCB, sCB, sT1)
    p('s_mul_i32 s%d, s%d, %d', sEB, sC, 6 * 16 * 512)
    p('s_add_u32 s%d, s%d, 0x%x', sEB, sEB, WS_E)
    p('s_mul_i32 s%d, s%d, 12', sT0, sI)
    p('s_add_u32 s%d, s%d, s%d', sT0, sT0, sW)
    p('s_mul_i32 s%d, s%d, 12288', sT0, sT0)
    p('s_mul_i32 s%d, s%d, %d', sT2, sC, PART_SZ)
    p('s_add_u32 s%d, s%d, s%d', sT0, sT0, sT2)
    p('s_add_u32 s%d, s%d, 0x%x', sPART, sT0, WS_PART + 4 * PART_SZ)
    p('s_mov_b32 s%d, 0xffff0000', sMASK)
    sc = TMP + 2
    p('v_lshrrev_b32 v%d, 5, v0', TMP + 3)
    p('s_lshl_b32 s%d, s%d, 1', sT0, sW)
    p('v_add_u32 v%d, s%d, v%d', sc, sT0, TMP + 3)
    p('v_cvt_f32_u32 v%d, v%d', vFM, sc)
    p('v_mov_b32 v%d, 0x%x', TMP + 4, f2u(1792.0))
    p('v_mov_b32 v%d, 0x%x', TMP + 5, f2u(-256.0))
    p('v_fma_f32 v%d, v%d, v%d, v%d', vFN, vFM, TMP + 5, TMP + 4)
    p('v_mul_f32 v%d, 0x%x, v%d', vFM, f2u(16.0), vFM)
    p('v_lshl_add_u32 v%d, v%d, 8, v%d', vES, sc, vEC)
    p('v_add_u32 v%d, %d, v%d', vES, LDS_ET, vES)
    p('v_lshlrev_b32 v%d, 1, v%d', TMP + 4, sc)
    p('s_sub_u32 s%d, s%d, 16', sT0, sI)
    p('v_add_u32 v%d, s%d, v%d', TMP + 4, sT0, TMP + 4)
    p('v_lshlrev_b32 v%d, 1, v%d', TMP + 5, vEC)
    p('v_mov_b32 v%d, 0x%x', TMP + 6, OOB)
    for (q, vr, sm) in ((0, vLB0, sM0), (1, vLB1, sM1)):
        if q: p('v_add_u32 v%d, 1, v%d', TMP + 4, TMP + 4)
        p('v_lshl_add_u32 v%d, v%d, 9, v%d', TMP + 7, TMP + 4, TMP + 5)
        p('v_cmp_le_i32 vcc, 0, v%d', TMP + 4)
        p('v_cndmask_b32 v%d, v%d, v%d, vcc', vr, TMP + 6, TMP + 7)
        p('s_mov_b64 s[%d:%d], vcc', sm, sm + 1)
    p('s_lshl_b32 s%d, s%d, 9', sT0, sI)
    p('v_add_u32 v%d, s%d, v%d', TMP + 7, sT0, TMP + 5)
    p('v_cmp_eq_u32 vcc, 7, v%d', sc)
    p('v_cndmask_b32 v%d, v%d, v%d, vcc', vEP, TMP + 6, TMP + 7)
    p('s_lshl_b32 s%d, s%d, 11', sT0, sW)
    p('s_add_u32 s%d, s%d, %d', sT0, sT0, LDS_TR)
    p('v_lshlrev_b32 v%d, 3, v%d', vTW, vEC)
    p('v_lshl_add_u32 v%d, v%d, 5, v%d', vTW, TMP + 3, vTW)
    p('v_add_u32 v%d, s%d, v%d', vTW, sT0, vTW)
    p('v_bfe_u32 v%d, v0, 2, 2', TMP + 4)
    p('v_lshl_add_u32 v%d, v%d, 3, v%d', TMP + 4, TMP + 3, TMP + 4)
    p('v_lshlrev_b32 v%d, 6, v%d', TMP + 4, TMP + 4)
    p('v_bfe_u32 v%d, v0, 4, 1', TMP + 5)
    p('v_lshl_add_u32 v%d, v%d, 5, v%d', TMP + 4, TMP + 5, TMP + 4)
    p('v_and_b32 v%d, 3, v0', TMP + 5)
    p('v_lshl_add_u32 v%d, v%d, 3, v%d', TMP + 4, TMP + 5, TMP + 4)
    p('v_add_u32 v%d, s%d, v%d', vTR, sT0, TMP + 4)
    p('v_add_u32 v%d, %d, v%d', vEC, LDS_GT, vEC)
    p('v_lshlrev_b32 v%d, 4, v0', vL16)
    p('v_mov_b32 v%d, 0', TMP + 4)
    p('v_mov_b32 v%d, 0', TMP + 5)
    p('ds_write_b64 v%d, v[%d:%d]', vES, TMP + 4, TMP + 5)
    p('v_bfe_u32 v%d, v0, 4, 1', TMP + 4)
    p('v_mul_u32_u24 v%d, 6144, v%d', TMP + 4, TMP + 4)
    p('v_and_b32 v%d, 15, v0', TMP + 5)
    p('v_lshl_add_u32 v%d, v%d, 7, v%d', TMP + 4, TMP + 5, TMP + 4)
    p('v_lshrrev_b32 v%d, 1, v%d', TMP + 5, TMP + 5)
    p('v_xor_b32 v%d, v%d, v%d', TMP + 5, TMP + 5, TMP + 3)
    p('v_lshl_add_u32 v%d, v%d, 4, v%d', RA[0], TMP + 5, TMP + 4)
    for k in range(1, 4): p('v_xor_b32 v%d, %d, v%d', RA[k], 32 * k, RA[0])
    vTok = vSP
    p('v_bfe_u32 v%d, v0, 2, 1', TMP + 4)
    p('v_bfe_u32 v%d, v0, 3, 2', TMP + 5)
    p('v_lshlrev_b32 v%d, 2, v%d', TMP + 5, TMP + 5)
    p('v_lshl_add_u32 v%d, v%d, 4, v%d', TMP + 4, TMP + 4, TMP + 5)
    p('v_and_b32 v%d, 3, v0', TMP + 5)
    p('v_add_u32 v%d, v%d, v%d', vTok, TMP + 4, TMP + 5)
    XA = [TMP + 8, TMP + 9, TMP + 10, TMP + 11]
    x_read_addr(p, XA, vTok, TMP + 4, TMP + 5)
    LOG2E = math.log2(math.e)
    for k in range(6):
        a, b, c, d = PA(k), PA(k) + 1, PA(k) + 2, PA(k) + 3
        t = [TMP + j for j in range(6)] if k % 2 == 0 else [vLh + j for j in range(6)]
        p('v_lshlrev_b32 v%d, 16, v%d', c, c)
        p('v_mul_f32 v%d, 0x%x, v%d', c, f2u(LOG2E), c)
        p('v_exp_f32 v%d, v%d', c, c)
        p('v_lshlrev_b32 v%d, 16, v%d', t[0], a)
        p('v_lshlrev_b32 v%d, 16, v%d', t[1], b)
        p('v_cvt_pk_bf16_f32 v%d, v%d, v%d', c, c, c)
        p('v_lshlrev_b32 v%d, 16, v%d', c, c)
        p('v_mul_f32 v%d, v%d, v%d', a, c, t[0])
        p('v_mul_f32 v%d, v%d, v%d', b, c, t[1])
        p('v_mul_f32 v%d, 0x%x, v%d', a, f2u(LOG2E), a)
        p('v_mul_f32 v%d, 0x%x, v%d', b, f2u(0.5 / math.pi), b)
        p('v_exp_f32 v%d, v%d', t[2], a)
        p('v_fract_f32 v%d, v%d', t[3], b)
        p('v_cos_f32 v%d, v%d', t[4], t[3])
        p('v_sin_f32 v%d, v%d', t[3], t[3])
        p('v_mul_f32 v%d, v%d, v%d', t[5], t[0], t[0])
        p('v_fma_f32 v%d, v%d, v%d, v%d', t[5], t[1], t[1], t[5])
        p('v_rcp_f32 v%d, v%d', t[5], t[5])
        p('v_fma_f32 v%d, v%d, v%d, -1.0', t[4], t[4], t[2])
        p('v_mul_f32 v%d, v%d, v%d', t[3], t[3], t[2])
        p('v_add_f32 v%d, v%d, v%d', t[5], t[5], t[5])
        p('v_mul_f32 v%d, v%d, v%d', c, t[4], t[0])
        p('v_mul_f32 v%d, v%d, v%d', d, t[3], t[0])
        p('v_fma_f32 v%d, v%d, v%d, v%d', c, t[3], t[1], c)
        p('v_fma_f32 v%d, -v%d, v%d, v%d', d, t[4], t[1], d)
        p('v_mul_f32 v%d, v%d, v%d', c, c, t[5])
        p('v_mul_f32 v%d, v%d, v%d', d, d, t[5])

    def dma(n, q):
        buf = (n % NBUF) * SLOT; e, g = q // 2, q % 2
        p('s_add_u32 m0, s%d, %d', sLW, buf + q * 1024)
        if n < 18:
            b, t3 = n // 3, n % 3
            p('s_add_u32 s%d, s%d, %d', sT0, sBB, (32 * b + 8 * g) * 1152 + 384 * t3 + 128 * e)
            sr = sB
        else:
            P, m = (n - 18) // 6, (n - 18) % 6
            p('s_add_u32 s%d, s%d, %d', sT0, sCB, (192 * (m // 2) + 32 * e + 8 * g) * 1152 + 128 * P)
            sr = sCI if m % 2 else sCR
        p('buffer_load_dwordx4 v%d, s[%d:%d], s%d offen lds', vXO if g else vXE, sr, sr + 3, sT0, tag=('dma', n))
        return 16
    def wdma(n):
        for q in range(6): dma(n, q)
    vt = TMP
    x_stage(p, o, XA, xraw, vt, wdma)
    stamp(p, o, 2)
    vSC, vSH = TMP + 6, TMP + 7
    p('v_add_f32 v%d, 0x%x, v%d', vt + 1, f2u(1e-5), vt + 1)
    p('v_rsq_f32 v%d, v%d', vt + 1, vt + 1)
    p('s_lshl_b32 s%d, s%d, 2', sT0, sI)
    p('s_add_u32 s%d, s%d, s%d', sT0, sT0, sW)
    p('s_lshl_b32 s%d, s%d, 8', sT0, sT0)
    p('s_add_u32 s%d, s%d, 0x%x', sT0, sT0, WS_STAT)
    p('s_cmp_eq_u32 s%d, 0', sC)
    p('s_cselect_b32 s%d, 32, 0', sT1)
    p('v_lshlrev_b32 v%d, 3, v%d', vt + 2, vTok)
    p('v_mov_b32 v%d, 0x%x', vt + 3, OOB)
    p('v_cmp_gt_u32 vcc, s%d, v0', sT1)
    p('v_cndmask_b32 v%d, v%d, v%d, vcc', vt + 2, vt + 3, vt + 2)
    p('buffer_store_dwordx2 v[%d:%d], v%d, s[%d:%d], s%d offen', vt, vt + 1, vt + 2, sWS, sWS + 3, sT0)
    p('v_mov_b32 v%d, v%d', vSC, vt + 1)
    p('v_mul_f32 v%d, v%d, v%d', vSH, vt, vt + 1)
    p('v_sub_f32 v%d, 0, v%d', vSH, vSH)

    dist = o.sdist
    tl = Timeline(p, dist, o.swper, lambda g: o.sbud0 if g < 72 else o.sbud, o.drop)
    norm_jobs(tl, xraw, lambda s: ('a', 4 * s), TMP + 8, vSC, vSH)
    stamp(p, o, 3)
    first = [True] * 18
    tend = {}
    for n in range(36):
        base = (n % 2) * SLOT
        if n < 18: order = [(s, t) for s in range(12) for t in range(2)]
        elif n == 35: order = [(ks, dt) for dt in range(6) for ks in range(4)]
        else: order = [(ks, dt) for ks in range(4) for dt in range(6)]
        for k, (u0, u1) in enumerate(order):
            g = len(tl.gaps)
            A = aA + 4 * (g % NA)
            if n < 18:
                b, t3 = n // 3, n % 3; s, t = u0, u1
                acc = R(b) + 16 * t; xs = 12 * t3 + s
                needs = [('y', xs)] if b == 0 else []
                if xs == 0 and b == 5: needs.append(('h', 0))
                C = '0' if xs == 0 else 'v[%d:%d]' % (acc, acc + 15)
                m = Ins('v_mfma_f32_32x32x16_bf16 v[%d:%d], a[%d:%d], a[%d:%d], %s' % (acc, acc + 15, 4 * xs, 4 * xs + 3, A, A + 3, C), needs=needs)
                rd = 'ds_read_b128 a[%d:%d], v%d offset:%d' % (A, A + 3, RA[s % 4], base + t * 12288 + (s // 4) * 2048)
            else:
                P, mm = (n - 18) // 6, (n - 18) % 6; ks, dt = u0, u1
                tt = 6 * (mm // 2) + dt; b = 2 * P + ks // 2
                acc = rng(tile(tt), 16)
                needs = [('h', b)]
                if first[tt] and tt >= 14 and tt != 16: needs.append(('h', [1, 2, 0, 3][tt - 14]))
                C = '0' if first[tt] else acc
                first[tt] = False
                m = Ins('v_mfma_f32_32x32x16_bf16 %s, a[%d:%d], %s, %s' % (acc, A, A + 3, rng(hfrag(b, mm % 2, ks % 2), 4), C), needs=needs)
                rd = 'ds_read_b128 a[%d:%d], v%d offset:%d' % (A, A + 3, RA[ks], base + (dt // 3) * 12288 + (dt % 3) * 2048)
                tend[tt] = g
            tl.gaps.append((m, [Ins(rd)], n, k == 0))

    def power(k, dst, scr, nf, e, pri, gives=None):
        a, b = PA(k), PA(k) + 1
        J = lambda s, **kw: tl.job(s, e, pri=pri, **kw)
        if nf is None:
            J('v_exp_f32 v%d, v%d' % (scr, a))
            J('v_fract_f32 v%d, v%d' % (dst + 1, b))
        else:
            J('v_mul_f32 v%d, %s, v%d' % (scr, nf, a))
            J('v_mul_f32 v%d, %s, v%d' % (dst + 1, nf, b))
            J('v_exp_f32 v%d, v%d' % (scr, scr))
            J('v_fract_f32 v%d, v%d' % (dst + 1, dst + 1))
        J('v_cos_f32 v%d, v%d' % (dst, dst + 1))
        J('v_sin_f32 v%d, v%d' % (dst + 1, dst + 1))
        J('v_mul_f32 v%d, v%d, v%d' % (dst, dst, scr))
        J('v_mul_f32 v%d, v%d, v%d' % (dst + 1, dst + 1, scr), gives=gives)
    def cmad(J, d, L, x, y, **kw):
        if y is None:
            J('v_mul_f32 v%d, v%d, v%d' % (d[0], L, x[0]), **kw.get('first', {}))
            J('v_mul_f32 v%d, v%d, v%d' % (d[1], L, x[1]))
        else:
            J('v_fma_f32 v%d, v%d, v%d, v%d' % (d[0], L, x[0], y[0]), **kw.get('first', {}))
            J('v_fma_f32 v%d, v%d, v%d, v%d' % (d[1], L, x[1], y[1]))
        J('v_fma_f32 v%d, -v%d, v%d, v%d' % (d[0], L + 1, x[1], d[0]))
        J('v_fma_f32 v%d, v%d, v%d, v%d' % (d[1], L + 1, x[0], d[1]), gives=kw.get('gives'))
    pr = lambda r: (r, r + 1)
    lit = lambda x: '0x%x' % f2u(x)
    bneed = {}
    for k in range(6):
        T0 = 72 * (k + 1); Rk = R(k)
        Ba = 3 * (k + 1) + 1
        power(k, vLh, vSP, None, T0 - 6, 0)
        e = T0 + 2
        J = lambda s, e=e, **kw: tl.job(s, e, pri=0, **kw)
        cur = (Rk, Rk + 16)
        for r in range(1, 16):
            d = pr(TMP + 2 * (r % 2))
            cmad(J, d, vLh, cur, (Rk + r, Rk + 16 + r)); cur = d
        cmad(J, pr(TMP + 4), PA(k) + 2, cur, None)
        J('ds_write_b64 v%d, v[%d:%d] offset:%d' % (vES, TMP + 4, TMP + 5, 7 * 256), gives=('ew', k), tag=('ew', k))
        J('v_mov_b32 v%d, v%d' % (vE, TMP + 4)); J('v_mov_b32 v%d, v%d' % (vE + 1, TMP + 5))
        bneed.setdefault(Ba, []).append(('ew', k))
        e = 24 * Ba - dist
        J = lambda s, e=e, **kw: tl.job(s, e, pri=0, **kw)
        for j in range(3):
            J('ds_read2_b64 v[%d:%d], v%d offset0:%d offset1:%d' % (TMP + 4 * j, TMP + 4 * j + 3, vES, 64 * j, 64 * j + 32))
        J('ds_read_b64 v[%d:%d], v%d offset:%d' % (TMP + 12, TMP + 13, vES, 6 * 256), gives=('er', k))
        power(k, vLh, vSP, lit(16.0), e, 0)
        cur = pr(TMP)
        for j in range(1, 7):
            d = pr(TMP + 2 * j) if j < 6 else pr(vIl + 2 * (k % 2))
            cmad(J, d, vLh, cur, pr(TMP + 2 * j), first=(dict(after=(('er', k), 3)) if j == 1 else {})); cur = d
        cmad(J, pr(TMP), vLh, cur, pr(vE))
        J('v_mov_b32 v%d, s%d' % (TMP + 2, sNONCE)); J('v_mov_b32 v%d, s%d' % (TMP + 3, sNONCE))
        J('s_add_u32 s%d, s%d, %d' % (sT1, sEB, k * 8192))
        J('buffer_store_dwordx4 v[%d:%d], v%d, s[%d:%d], s%d offen sc1' % (TMP, TMP + 3, vEP, sWS, sWS + 3, sT1), gives=('pub', k))
        bneed.setdefault(Ba + 1, []).append(('pub', k))
        e = T0 + 72 + o.lb_issue
        lbl = ['s_add_u32 s%d, s%d, %d' % (sT1, sEB, k * 8192)] + \
              ['buffer_load_dwordx4 v[%d:%d], v%d, s[%d:%d], s%d offen sc1' % (vLB + 4 * q, vLB + 4 * q + 3, vLB0 + q, sWS, sWS + 3, sT1) for q in range(2)]
        def iss(lbl=lbl):
            for l in lbl: p(l)
        tl.call(iss, e, 20, ('lbi', k))
        e = T0 + 72 + 48 - dist
        J = lambda s, e=e, **kw: tl.job(s, e, pri=0, **kw)
        power(k, TMP + 4, vSP, lit(128.0), e, 0)
        power(k, TMP + 6, vSP, 'v%d' % vFN, e, 0)
        chk = ['v_cmp_ne_u32 vcc, s%d, v%d' % (sNONCE, vLB + 2),
               's_and_b64 s[%d:%d], vcc, s[%d:%d]' % (sT2, sT3, sM0, sM0 + 1),
               'v_cmp_ne_u32 vcc, s%d, v%d' % (sNONCE, vLB + 6),
               's_and_b64 vcc, vcc, s[%d:%d]' % (sM1, sM1 + 1),
               's_or_b64 vcc, vcc, s[%d:%d]' % (sT2, sT3)]
        def check(k=k, lbl=lbl, chk=chk):
            if o.nowait: return
            for c in chk: p(c)
            p('s_cbranch_vccnz L_lb%d', k)
            p.label('L_lb%d_b' % k)
            fallback(tail, 'L_lb%d' % k, lbl, chk)
        tl.call(check, e, 24, None, 0, [('lbi', k)], lag=o.lb_lag)
        cmad(J, pr(TMP + 8), TMP + 4, pr(vLB), pr(vLB + 4))
        cmad(J, pr(TMP + 10), TMP + 6, pr(TMP + 8), None)
        J('ds_write_b64 v%d, v[%d:%d] offset:%d' % (vES, TMP + 10, TMP + 11, LDS_GT - LDS_ET), gives=('gw', k), tag=('gw', k))
        Bc = Ba + 5
        bneed.setdefault(Bc, []).append(('gw', k))
        e = 24 * Bc - dist
        J = lambda s, e=e, **kw: tl.job(s, e, pri=0, **kw)
        for j in range(4):
            J('ds_read2_b64 v[%d:%d], v%d offset0:%d offset1:%d' % (TMP + 4 * j, TMP + 4 * j + 3, vEC, 64 * j, 64 * j + 32),
              gives=('gr', k) if j == 3 else None)
        for st in (2, 4, 8):
            for j in range(0, 16, 2 * st):
                for x in range(2):
                    J('v_add_f32 v%d, v%d, v%d' % (TMP + j + x, TMP + j + x, TMP + j + st + x),
                      **(dict(after=(('gr', k), 3)) if (st, j, x) == (2, 0, 0) else {}))
        power(k, TMP + 2, vSP, 'v%d' % vFM, e, 0)
        cmad(J, pr(vI), TMP + 2, pr(TMP), pr(vIl + 2 * (k % 2)), gives=('I', k),
             first=(dict(needs=[('h', k - 1)]) if k else {}))
        bneed.setdefault(Bc + 1, []).append(('I', k))
        J = lambda s, e=e, **kw: tl.job(s, e, pri=1, **kw)
        power(k, vLl, vLo, None, e, 1)
        cur = pr(vI)
        for r in range(16):
            x = (Rk + r, Rk + 16 + r)
            cmad(J, pr(vLo), PA(k) + 2, x, None)
            cmad(J, x, vLl, cur, pr(vLo), first=(dict(needs=[('I', k)]) if r == 0 else {})); cur = x
        for part in range(2):
            b0 = Rk + 16 * part
            for j in range(8):
                ng = '-' if part else ''
                J('v_cvt_pk_bf16_f32 v%d, %sv%d, %sv%d' % (b0 + j, ng, b0 + 2 * j, ng, b0 + 2 * j + 1))
        for part in range(2):
            b0 = Rk + 16 * part
            for j in range(2):
                J('ds_write_b128 v%d, v[%d:%d] offset:%d' % (vTW, b0 + 4 * j, b0 + 4 * j + 3, 16 * j))
            for half in range(2):
                kr = hfrag(k, part, half)
                for u in range(2):
                    J('ds_read_b64_tr_b16 %s, v%d offset:%d' % (rng((kr[0], kr[1] + 2 * u), 2), vTR, (16 * half + 4 * u) * 64),
                      gives=('h', k) if (part, half, u) == (1, 1, 1) else None)
    stg = [TMP, TMP + 4, TMP + 8, TMP + 12, vLB, vLB + 4]
    ns = 0
    for tt in range(18):
        e = tend[tt] + 2
        kind, r0 = tile(tt)
        for half in range(2):
            st = stg[ns % len(stg)]; ns += 1
            for k in range(4):
                a0 = r0 + 8 * half + 2 * k
                if kind == 'a':
                    t0 = vLh + 2 * (k % 2)
                    tl.job('v_accvgpr_read_b32 v%d, a%d' % (t0, a0), e, pri=1)
                    tl.job('v_accvgpr_read_b32 v%d, a%d' % (t0 + 1, a0 + 1), e, pri=1)
                    tl.job('v_cvt_pk_bf16_f32 v%d, v%d, v%d' % (st + k, t0, t0 + 1), e, pri=1)
                else:
                    tl.job('v_cvt_pk_bf16_f32 v%d, v%d, v%d' % (st + k, a0, a0 + 1), e, pri=1)
            if half == 0 and tt % 2 == 0:
                tl.job('s_add_u32 s%d, s%d, %d' % (sT1, sPART, (tt // 6) * 49152 + (tt % 6) * 2048), e, pri=1)
            tl.job('buffer_store_dwordx4 v[%d:%d], v%d, s[%d:%d], s%d offen offset:%d' % (st, st + 3, vL16, sWS, sWS + 3, sT1, (tt % 2) * 2048 + half * 1024), e, pri=1)
    for n in range(2, 32):
        if 'd' in o.drop: break
        for q in range(6):
            tl.at(24 * n - dist + 1 + o.dmastep * q, (lambda n=n, q=q: dma(n + 4, q)))
    if not o.nowait: nonce_events(p, tl, tail, vLB, 30, 60, 'L_sn')
    def slot_fn(n):
        c = 8
        tl.force(bneed.get(n, []))
        for t in bneed.get(n, []): p.waitds(t)
        p.waitvm(('dma', n))
        if n == 0: p('s_waitcnt lgkmcnt(0)')
        p('s_barrier')
        if n and n % 2 == 0:
            for a in RA: p('v_add_u32 v%d, %d, v%d', a, (2 * SLOT if n % 6 else -4 * SLOT), a)
            c += 16
        if n % 2 == 0: stamp(p, o, 4 + n // 2)
        return c
    tl.run(slot_fn)
    print('ssm forced', tl.forced, {k: v for k, v in tl.flog.items() if k[0] != 'y'}, file=sys.stderr)
    print('ssm log', {k: v for k, v in tl.log.items() if k[0] in ('h', 'pub', 'lbi', 'gw', 'I')}, file=sys.stderr)
    dump_stamps(p, o, TMP, TMP + 1)
    p('s_endpgm')
    p.label('L_ssm_end')
```

```python
import sys, argparse
sys.path.insert(0, 'gen')
from common import *
from kit import NAME, descriptor, file_text
import main as v1
from ssm import ssm_path
from final import final_kernel

def main_kernel(o):
    p = Prog(); tail = []
    name = 'main_kernel'
    p.raw('.globl %s\n.p2align 8\n.type %s,@function' % (name, name))
    p.label(name)
    v1.common_entry(p, o)
    if not o.nowait:
        p('s_or_b32 s%d, s2, s%d', sT0, sW)
        p('s_cmp_lg_u32 s%d, 0', sT0)
        p('s_cbranch_scc1 L_non')
        p.raw('    s_memrealtime s[%d:%d]' % (sT2, sT3))
        p.raw('    s_waitcnt lgkmcnt(0)')
        p.raw('    s_lshl_b32 s%d, s%d, 3' % (sT2, sT2))
        p.raw('    s_or_b32 s%d, s%d, 0x80000000' % (sT2, sT2))
        p.raw('    v_mov_b32 v1, s%d' % sT2)
        p.raw('    s_mov_b64 exec, 1')
        p.raw('    buffer_store_dword v1, off, s[%d:%d], 0 sc1' % (sDBG, sDBG + 3))
        p.raw('    s_mov_b64 exec, -1')
        p.raw('    s_nop 1')
        p.label('L_non')
    p('s_cmp_eq_u32 s%d, 4', sJ)
    p('s_cbranch_scc1 L_ssm')
    st = {}
    if o.mlp == 1: v1.mlp_path(p, o, tail)
    else:
        from mlp import mlp_path
        mlp_path(p, o, tail)
    p.label('L_end')
    p('s_endpgm')
    txt = p.finalize(st) + '\n'.join(tail) + '\n'
    print('mlp', st, file=sys.stderr)
    p = Prog(); tail = []
    ssm_path(p, o, tail)
    txt += p.finalize(st) + '\n'.join(tail) + '\n'
    print('ssm', st, file=sys.stderr)
    return txt

if __name__ == '__main__':
    ap = argparse.ArgumentParser()
    A = ap.add_argument
    A('-o', default='full.s')
    A('--map', default='A'); A('--drop', default=''); A('--stamps', type=int, default=0)
    A('--nowait', type=int, default=0); A('--jitnorm', type=int, default=1); A('--mlp', type=int, default=1)
    A('--dist', type=int, default=3); A('--budget', type=int, default=16); A('--dmastep', type=int, default=2)
    A('--rstep', type=int, default=2); A('--polllag', type=int, default=24)
    A('--pub', default='16,24,28'); A('--poll', default='456,624,720')
    A('--touch', type=int, default=1); A('--final', type=int, default=1)
    A('--sdist', type=int, default=3); A('--swper', type=int, default=1)
    A('--sbud0', type=int, default=48); A('--sbud', type=int, default=20)
    A('--lb_issue', type=int, default=26); A('--lb_lag', type=int, default=30)
    A('--wper', type=int, default=2); A('--bud0', type=int, default=40)
    o = ap.parse_args()
    o.pub = [int(x) for x in o.pub.split(',')]; o.poll = [int(x) for x in o.poll.split(',')]
    body = main_kernel(o)
    launches = [('main_kernel', 240, 256, LDS_TOTAL)]
    descs = [descriptor('main_kernel', 512, 102, 256)]
    if o.final:
        body += final_kernel(o)
        launches.append(('final_kernel', 576, 256, 0))
        descs.append(descriptor('final_kernel', 72, 40, 72))
    txt = file_text(launches, body, descs)
    txt = '\n'.join(l[3:] if l.startswith('    ') else l for l in txt.split('\n'))
    open(o.o, 'w').write(txt)
    print('size', len(txt), file=sys.stderr)
```

```python
import sys, argparse
sys.path.insert(0, 'gen')
from common import *
from kit import NAME, descriptor, file_text
import main as v1
from ssm import ssm_path
from final import final_kernel

def main_kernel(o):
    p = Prog(); tail = []
    name = 'main_kernel'
    p.raw('.globl %s\n.p2align 8\n.type %s,@function' % (name, name))
    p.label(name)
    v1.common_entry(p, o)
    if not o.nowait:
        p('s_or_b32 s%d, s2, s%d', sT0, sW)
        p('s_cmp_lg_u32 s%d, 0', sT0)
        p('s_cbranch_scc1 L_non')
        p.raw('    s_memrealtime s[%d:%d]' % (sT2, sT3))
        p.raw('    s_waitcnt lgkmcnt(0)')
        p.raw('    s_lshl_b32 s%d, s%d, 3' % (sT2, sT2))
        p.raw('    s_or_b32 s%d, s%d, 0x80000000' % (sT2, sT2))
        p.raw('    v_mov_b32 v1, s%d' % sT2)
        p.raw('    s_mov_b64 exec, 1')
        p.raw('    buffer_store_dword v1, off, s[%d:%d], 0 sc1' % (sDBG, sDBG + 3))
        p.raw('    s_mov_b64 exec, -1')
        p.raw('    s_nop 1')
        p.label('L_non')
    p('s_cmp_eq_u32 s%d, 4', sJ)
    p('s_cbranch_scc1 L_ssm')
    st = {}
    if o.mlp == 1: v1.mlp_path(p, o, tail)
    else:
        from mlp import mlp_path
        mlp_path(p, o, tail)
    p.label('L_end')
    p('s_endpgm')
    txt = p.finalize(st) + '\n'.join(tail) + '\n'
    print('mlp', st, file=sys.stderr)
    p = Prog(); tail = []
    ssm_path(p, o, tail)
    txt += p.finalize(st) + '\n'.join(tail) + '\n'
    print('ssm', st, file=sys.stderr)
    return txt

if __name__ == '__main__':
    ap = argparse.ArgumentParser()
    A = ap.add_argument
    A('-o', default='full.s')
    A('--map', default='A'); A('--drop', default=''); A('--stamps', type=int, default=0)
    A('--nowait', type=int, default=0); A('--jitnorm', type=int, default=1); A('--mlp', type=int, default=1)
    A('--dist', type=int, default=3); A('--budget', type=int, default=16); A('--dmastep', type=int, default=2)
    A('--rstep', type=int, default=2); A('--polllag', type=int, default=24)
    A('--pub', default='16,24,28'); A('--poll', default='456,624,720')
    A('--touch', type=int, default=1); A('--final', type=int, default=1)
    A('--sdist', type=int, default=3); A('--swper', type=int, default=1)
    A('--sbud0', type=int, default=48); A('--sbud', type=int, default=20)
    A('--lb_issue', type=int, default=26); A('--lb_lag', type=int, default=30)
    A('--wper', type=int, default=2); A('--bud0', type=int, default=40)
    A('--xl', default='')
    o = ap.parse_args()
    o.pub = [int(x) for x in o.pub.split(',')]; o.poll = [int(x) for x in o.poll.split(',')]
    body = main_kernel(o)
    launches = [('main_kernel', 240, 256, LDS_TOTAL)]
    descs = [descriptor('main_kernel', 512, 102, 256)]
    if o.final:
        body += final_kernel(o)
        launches.append(('final_kernel', 576, 256, 0))
        descs.append(descriptor('final_kernel', 72, 40, 72))
    for x in o.xl:
        if x == 'f': launches.append(('final_kernel', 576, 256, 0))
        if x == 'e':
            if 'empty_kernel' not in body:
                body += '.globl empty_kernel\n.p2align 8\n.type empty_kernel,@function\nempty_kernel:\n s_endpgm\n'
                descs.append(descriptor('empty_kernel', 8, 16, 8))
            launches.append(('empty_kernel', 1, 64, 0))
        if x == 'm': launches.insert(0, launches[0])
    txt = file_text(launches, body, descs)
    txt = '\n'.join(l[3:] if l.startswith('    ') else l for l in txt.split('\n'))
    open(o.o, 'w').write(txt)
    print('size', len(txt), file=sys.stderr)
```
